```python
import torch

def _softmax(x, axis=-1):
    return torch.softmax(x, dim=axis)
def _gelu(x):
    return torch.nn.functional.gelu(x, approximate="tanh")
def _silu(x):
    return torch.nn.functional.silu(x)
def _sigmoid(x):
    return torch.sigmoid(x)
def _layernorm(x, axis=-1, eps=1e-5):
    m = x.mean(dim=axis, keepdim=True)
    v = x.var(dim=axis, keepdim=True, unbiased=False)
    return (x - m) / torch.sqrt(v + eps)
def _scatter_add(tgt, idx, src, axis=0):
    return tgt.clone().index_add_(axis, idx, src)
def _segment_sum(src, seg, n):
    out = torch.zeros((n,) + src.shape[1:], dtype=src.dtype)
    return out.index_add_(0, seg, src)
def _pad(x, pw):
    flat = tuple(v for pair in reversed(pw) for v in pair)
    return torch.nn.functional.pad(x, flat)

kernel_name = 'recurrent_scan__mha_block_cached__swiglu_ffn__decode'

def setup_inputs():

    _w = (lambda a: (lambda t: t.to(torch.bfloat16) if t.is_floating_point() else t)(torch.as_tensor(a)))
    def _A_setup():
        B, Sq, D = 1, 1, 512
        H, Sk, Dh = 32, 32768, 128
        return {
            "x": _w((lambda *s: torch.randn(*s, dtype=torch.bfloat16) * 0.05)(B, Sq, D)),
            "k_cache": _w((lambda *s: torch.randn(*s, dtype=torch.bfloat16) * 0.8)(B, H, Sk, Dh)),
            "v_cache": _w((lambda *s: torch.randn(*s, dtype=torch.bfloat16) * 0.8)(B, H, Sk, Dh)),
            "wq": _w((lambda *s: torch.randn(*s, dtype=torch.bfloat16) * 0.8)(D, H * Dh) * (D ** -0.5)),
            "wo": _w((lambda *s: torch.randn(*s, dtype=torch.bfloat16) * 0.8)(H * Dh, D) * ((H * Dh) ** -0.5)),
        }
    _A_in = _A_setup()

    def _B_setup():
        B, S, D, F = 1, 1, 512, 1376
        return {
            "x": _w((lambda *s: torch.randn(*s, dtype=torch.bfloat16) * 0.05)(B, S, D)),
            "w_gate": _w((lambda *s: torch.randn(*s, dtype=torch.bfloat16) * 0.2)(D, F)),
            "w_up": _w((lambda *s: torch.randn(*s, dtype=torch.bfloat16) * 0.2)(D, F)),
            "w_down": _w((lambda *s: torch.randn(*s, dtype=torch.bfloat16) * 0.2)(F, D)),
        }
    _B_in = _B_setup()

    return {
        "A_x": _A_in["x"],
        "A_k_cache": _A_in["k_cache"],
        "A_v_cache": _A_in["v_cache"],
        "A_wq": _A_in["wq"],
        "A_wo": _A_in["wo"],
        "B_x": _B_in["x"],
        "B_w_gate": _B_in["w_gate"],
        "B_w_up": _B_in["w_up"],
        "B_w_down": _B_in["w_down"],
    }

def reference(A_x, A_k_cache, A_v_cache, A_wq, A_wo, B_x, B_w_gate, B_w_up, B_w_down):
    def _A_ref(x, k_cache, v_cache, wq, wo):
        B, Sq, D = x.shape
        H, Dh = 32, 128
        q = (lambda x, *d: x.permute(*d))((x @ wq).reshape(B, Sq, H, Dh), 0, 2, 1, 3)
        scores = torch.einsum("bhqd,bhkd->bhqk", q, k_cache) * (Dh ** -0.5)
        p = _softmax(scores, axis=-1)
        o = torch.einsum("bhqk,bhkd->bhqd", p, v_cache)
        return (lambda x, *d: x.permute(*d))(o, 0, 2, 1, 3).reshape(B, Sq, H * Dh) @ wo

    def _B_ref(x, w_gate, w_up, w_down):
        g = _silu(x @ w_gate)
        u = x @ w_up
        return (g * u) @ w_down

    x = A_x
    xn = _layernorm(x, axis=-1)
    s = _A_ref(xn, A_k_cache, A_v_cache, A_wq, A_wo)
    g = _silu(_B_ref(xn, B_w_gate, B_w_up, B_w_down))
    return x + s * g
```

```python
import sys, struct

KN = "recurrent_scan__mha_block_cached__swiglu_ffn__decode_kernel"

def f2u(x):
    return struct.unpack("<I", struct.pack("<f", x))[0]

LOG2E = 1.4426950408889634
C_SCALE = LOG2E / (128.0 ** 0.5)
BIG = 0x80000000
SPIN = 0x2000

L_XS = 0
L_QP = 2048
L_GP = 6144
L_OW = 8192
L_ML = 12416
L_TP = 12544
L_RD = 28928
LDS_SIZE = 29952

WS_T = 0
WS_Y = 0x80000
WS_ML = 0x100000
WS_SIZE = 0x200000
WS_STAMP = 0x400000

sK, sV, sWQ, sWO, sX, sG, sU, sD, sWS, sOUT, sDBG = 8, 12, 16, 20, 24, 28, 32, 36, 40, 44, 48
S_W, S_H, S_J, S_P = 76, 77, 78, 79
S_NK, S_NV = 80, 81
S_CNT = 82
S_C = 83
S_F = 84
S_4096 = 85
S_H0 = 86
def srd(b): return f"s[{b}:{b+3}]"

V_TID, V_LANE, V_L16 = 0, 1, 2
V_T = 3
V_R, V_C = 11, 12
V_MASK = 16
V_Q = 20
V_ACC = 24
V_M, V_MC, V_L, V_MX = 28, 29, 30, 31
V_S = 32
V_P = 36
V_PP = 40
V_A = 44
V_KA, V_VA, V_KB, V_VB = 60, 76, 92, 108
V_W = 124
V_GU = 188
V_WD = 196
V_X = 212
V_OT, V_OY, V_OML, V_XROW = 216, 217, 218, 219
V_F = 220
V_OWO = 236
V_OWD = 237
V_OGU = 238
V_ODBG = 239
NVGPR = 240

def vr(b, n=1):
    return f"v{b}" if n == 1 else f"v[{b}:{b+n-1}]"

class Gen:
    def __init__(self, prof=False):
        self.L = []
        self.q = []
        self.prof = prof
        self.ool = []
    def A(self, s): self.L.append("    " + s)
    def lab(self, s): self.L.append(s + ":")
    def C(self, s): self.L.append("    ; " + s)
    def vm(self, tag, s):
        self.A(s); self.q.append(tag)
    def wait(self, *tags):
        last = -1
        for i, t in enumerate(self.q):
            if t in tags: last = i
        if last < 0:
            return
        n = len(self.q) - 1 - last
        assert n <= 63, n
        self.A(f"s_waitcnt vmcnt({n})")
        self.q = self.q[last+1:]
    def nop(self, n):
        while n > 0:
            k = min(n, 16)
            self.A(f"s_nop {k-1}")
            n -= k
    def dpp_add(self, d, ctrl, op="v_add_f32_dpp"):
        self.A(f"{op} v{d}, v{d}, v{d} {ctrl} row_mask:0xf bank_mask:0xf")
    def xrow_allreduce(self, d, t, op="v_add_f32"):
        self.A(f"v_mov_b32 v{t}, v{d}")
        self.nop(2)
        self.A(f"v_permlane16_swap_b32 v{d}, v{t}")
        self.nop(1)
        self.A(f"{op} v{d}, v{d}, v{t}")
        self.nop(1)
        self.A(f"v_mov_b32 v{t}, v{d}")
        self.nop(2)
        self.A(f"v_permlane32_swap_b32 v{d}, v{t}")
        self.nop(1)
        self.A(f"{op} v{d}, v{d}, v{t}")
    def row_allreduce(self, regs, op="v_add_f32_dpp", levels=(8, 4, 2, 1)):
        for lv in levels:
            if len(regs) < 3: self.nop(3 - len(regs))
            for d in regs: self.dpp_add(d, f"row_ror:{lv}", op)
    def stamp(self, idx):
        if not self.prof: return
        self.A("s_memrealtime s[4:5]")
        self.A("s_waitcnt lgkmcnt(0)")
        self.A(f"v_mov_b32 v{240+idx}, s4")

def kload(g, tag, base, sreg, srdb):
    for t in range(4):
        g.vm(tag, f"buffer_load_dwordx4 {vr(base+4*t,4)}, v{V_L16}, {srd(srdb)}, s{sreg} offen offset:{t*1024} nt")
    g.A(f"s_add_u32 s{sreg}, s{sreg}, 0x40000")

def unit(g, name, kb, vb, n, reissue):
    g.C(f"---- unit {name}")
    g.wait(("K", n))
    for j in range(4):
        for t in range(4):
            c = "0" if j == 0 else f"v{V_S+t}"
            g.A(f"v_dot2_f32_bf16 v{V_S+t}, v{kb+4*t+j}, v{V_Q+j}, {c}")
    if reissue:
        kload(g, ("K", n+2), kb, S_NK, sK)
    else:
        g.nop(3)
    g.row_allreduce([V_S+t for t in range(4)])
    g.A(f"v_max3_f32 v{V_MX}, v{V_S}, v{V_S+1}, v{V_S+2}")
    g.A(f"v_max_f32 v{V_MX}, v{V_MX}, v{V_S+3}")
    g.A(f"v_cmp_gt_f32 vcc, v{V_MX}, v{V_M}")
    g.A(f"s_cbranch_vccnz L_resc_{name}")
    g.lab(f"L_back_{name}")
    for t in range(4):
        g.A(f"v_fma_f32 v{V_P+t}, v{V_S+t}, s{S_C}, -v{V_MC}")
    for t in range(4):
        g.A(f"v_exp_f32 v{V_P+t}, v{V_P+t}")
    for t in range(4):
        g.A(f"v_cvt_pk_bf16_f32 v{V_PP+t}, v{V_P+t}, v{V_P+t}")
    for t in range(4):
        for j in range(4):
            g.A(f"v_and_b32 v{V_A+4*t+j}, v{V_PP+t}, v{V_MASK+j}")
        g.A(f"v_add_f32 v{V_L}, v{V_L}, v{V_P+t}")
    g.wait(("V", n))
    for t in range(4):
        g.A(f"v_mfma_f32_16x16x32_bf16 {vr(V_ACC,4)}, {vr(V_A+4*t,4)}, {vr(vb+4*t,4)}, {vr(V_ACC,4)}")
    if reissue:
        kload(g, ("V", n+2), vb, S_NV, sV)
    o = []
    a = lambda s: o.append("    " + s)
    o.append(f"L_resc_{name}:")
    T = V_T
    a(f"v_mov_b32 v{T}, v{V_MX}")
    a("s_nop 1")
    a(f"v_permlane16_swap_b32 v{V_MX}, v{T}")
    a("s_nop 0")
    a(f"v_max_f32 v{V_MX}, v{V_MX}, v{T}")
    a("s_nop 0")
    a(f"v_mov_b32 v{T}, v{V_MX}")
    a("s_nop 1")
    a(f"v_permlane32_swap_b32 v{V_MX}, v{T}")
    a("s_nop 0")
    a(f"v_max_f32 v{V_MX}, v{V_MX}, v{T}")
    a(f"v_sub_f32 v{T}, v{V_M}, v{V_MX}")
    a(f"v_mul_f32 v{T}, s{S_C}, v{T}")
    a(f"v_exp_f32 v{T}, v{T}")
    a(f"v_mov_b32 v{V_M}, v{V_MX}")
    a(f"v_mul_f32 v{V_MC}, s{S_C}, v{V_MX}")
    for j in range(4):
        a(f"v_mul_f32 v{V_ACC+j}, v{V_ACC+j}, v{T}")
    a(f"v_mul_f32 v{V_L}, v{V_L}, v{T}")
    a(f"s_branch L_back_{name}")
    g.ool += o

def bf16_round(g, d, s, tmp=None):
    g.A(f"v_cvt_pk_bf16_f32 v{d}, v{s}, v{s}")
    g.A(f"v_and_b32 v{d}, 0xffff0000, v{d}")

def silu(g, d, x, t0):
    g.A(f"v_mul_f32 v{t0}, {hex(f2u(-LOG2E))}, v{x}")
    g.A(f"v_exp_f32 v{t0}, v{t0}")
    g.nop(1)
    g.A(f"v_add_f32 v{t0}, 1.0, v{t0}")
    g.A(f"v_rcp_f32 v{t0}, v{t0}")
    g.nop(1)
    g.A(f"v_mul_f32 v{d}, v{x}, v{t0}")

def build(prof=False):
    g = Gen(prof)
    A = g.A
    L = g.L
    L.append(f"; @launch grid=(256,1,1) block=(512,1,1) lds={LDS_SIZE}")
    L.append('.amdgcn_target "amdgcn-amd-amdhsa--gfx950"')
    L.append(".text")
    L.append(f".globl {KN}")
    L.append(".p2align 8")
    L.append(f".type {KN},@function")
    L.append(f"{KN}:")
    A("s_cmp_ge_u32 s2, 0x100")
    A("s_cbranch_scc1 L_end")
    A("s_load_dwordx16 s[52:67], s[0:1], 0")
    A("s_load_dwordx8 s[68:75], s[0:1], 64")
    if prof:
        A("s_memrealtime s[4:5]")
    A(f"v_lshrrev_b32 v3, 6, v0")
    A(f"v_and_b32 v{V_LANE}, 63, v0")
    A(f"v_readfirstlane_b32 s{S_W}, v3")
    A(f"v_lshlrev_b32 v{V_L16}, 4, v{V_LANE}")
    A("s_and_b32 s3, s2, 7")
    A("s_lshr_b32 s6, s2, 3")
    A("s_and_b32 s7, s6, 3")
    A(f"s_lshl_b32 s{S_H}, s3, 2")
    A(f"s_add_u32 s{S_H}, s{S_H}, s7")
    A(f"s_lshr_b32 s{S_J}, s6, 2")
    A(f"s_lshl_b32 s{S_P}, s{S_H}, 3")
    A(f"s_add_u32 s{S_P}, s{S_P}, s{S_J}")
    A(f"s_lshl_b32 s{S_NK}, s{S_H}, 23")
    A(f"s_lshl_b32 s7, s{S_J}, 3")
    A(f"s_add_u32 s7, s7, s{S_W}")
    A(f"s_lshl_b32 s7, s7, 12")
    A(f"s_add_u32 s{S_NK}, s{S_NK}, s7")
    A(f"s_mov_b32 s{S_NV}, s{S_NK}")
    A(f"s_mul_i32 s{S_F}, s3, 22")
    A(f"s_add_u32 s{S_F}, s{S_F}, s6")
    A("s_cmp_lt_u32 s6, 22")
    A(f"s_cselect_b32 s{S_F}, s{S_F}, 0xffff")
    A(f"s_cmp_lt_u32 s{S_F}, 172")
    A(f"s_cselect_b32 s{S_F}, s{S_F}, 0xffff")
    A(f"s_mov_b32 s{S_4096}, 0x1000")
    A(f"s_mov_b32 s{S_C}, {hex(f2u(C_SCALE))}")
    for b, n in ((sX, 1024), (sK, 0x10000000), (sV, 0x10000000), (sWQ, 0x400000), (sWO, 0x400000),
                 (sG, 1409024), (sU, 1409024), (sD, 1409024), (sWS, WS_SIZE if not prof else 0x800000), (sOUT, 1024), (sDBG, 256)):
        A(f"s_mov_b32 s{b+2}, {hex(n)}")
        A(f"s_mov_b32 s{b+3}, 0x20000")
    if prof:
        A("s_waitcnt lgkmcnt(0)")
        A(f"v_mov_b32 v240, s4")
        for k in range(1, 8): A(f"v_mov_b32 v{240+k}, 0")
    A("s_waitcnt lgkmcnt(0)")
    def base(b, k):
        A(f"s_mov_b32 s{b}, s{52+2*k}")
        A(f"s_and_b32 s{b+1}, s{53+2*k}, 0xffff")
    base(sX, 0); base(sK, 1)
    g.vm("x", f"buffer_load_dwordx4 {vr(V_X,4)}, v{V_L16}, {srd(sX)}, 0 offen")
    kload(g, ("K", 0), V_KA, S_NK, sK)
    base(sV, 2); base(sWQ, 3); base(sWO, 4); base(sG, 6); base(sU, 7); base(sD, 8); base(sOUT, 9); base(sDBG, 10); base(sWS, 11)
    g.C("sentinel offsets")
    A(f"v_lshrrev_b32 v8, 2, v0")
    A(f"v_lshlrev_b32 v8, 14, v8")
    A(f"v_and_b32 v9, 3, v0")
    A(f"v_lshl_add_u32 v8, v9, 4, v8")
    A(f"v_mov_b32 v10, {hex(BIG)}")
    A(f"v_cmp_gt_u32 vcc, 0x80, v0")
    A(f"s_lshl_b32 s6, s{S_P}, 6")
    A(f"v_add_u32 v{V_OT}, s6, v8")
    A(f"s_lshl_b32 s7, s{S_F}, 6")
    A(f"s_add_u32 s7, s7, {hex(WS_Y)}")
    A(f"s_cmp_lt_u32 s{S_F}, 172")
    A(f"s_cselect_b32 s7, s7, {hex(BIG)}")
    A(f"v_add_u32 v{V_OY}, s7, v8")
    A(f"v_cndmask_b32 v{V_OT}, v10, v{V_OT}, vcc")
    A(f"v_cndmask_b32 v{V_OY}, v10, v{V_OY}, vcc")
    A(f"s_lshl_b32 s6, s{S_F}, 13")
    A(f"s_cmp_lt_u32 s{S_F}, 172")
    A(f"s_cselect_b32 s6, s6, {hex(BIG)}")
    A(f"v_lshlrev_b32 v9, 3, v0")
    A(f"v_add_u32 v{V_OWD}, s6, v9")
    A(f"v_cndmask_b32 v{V_OWD}, v10, v{V_OWD}, vcc")
    A(f"v_cmp_eq_u32 vcc, 0, v0")
    A(f"s_lshl_b32 s6, s{S_P}, 3")
    A(f"s_add_u32 s6, s6, {hex(WS_ML)}")
    A(f"v_mov_b32 v{V_OML}, s6")
    A(f"s_and_b32 s7, s2, 3")
    A(f"s_lshl_b32 s7, s7, 6")
    A(f"v_mov_b32 v{V_ODBG}, s7")
    A(f"v_cndmask_b32 v{V_OML}, v10, v{V_OML}, vcc")
    A(f"v_cndmask_b32 v{V_ODBG}, v10, v{V_ODBG}, vcc")
    for k in range(4): A(f"v_mov_b32 v{4+k}, -1")
    g.vm("st", f"buffer_store_dwordx4 v[4:7], v{V_OT}, {srd(sWS)}, 0 offen sc1")
    g.vm("st", f"buffer_store_dwordx4 v[4:7], v{V_OY}, {srd(sWS)}, 0 offen sc1")
    g.vm("st", f"buffer_store_dwordx2 v[4:5], v{V_OML}, {srd(sWS)}, 0 offen sc1")
    A(f"v_lshrrev_b32 v11, 4, v{V_LANE}")
    A(f"v_and_b32 v12, 15, v{V_LANE}")
    A(f"v_lshlrev_b32 v13, 4, v12")
    A(f"v_lshl_add_u32 v14, v11, 13, v13")
    A(f"v_lshl_add_u32 v{V_OWO}, v11, 10, v13")
    A(f"s_lshl_b32 s6, s{S_W}, 19")
    A(f"s_lshl_b32 s7, s{S_H}, 8")
    A(f"s_add_u32 s6, s6, s7")
    for i in range(16):
        g.vm(("wq", i), f"buffer_load_dwordx4 {vr(V_W+4*i,4)}, v14, {srd(sWQ)}, s6 offen")
        if i < 15: A("s_add_u32 s6, s6, 0x8000")
    kload(g, ("V", 0), V_VA, S_NV, sV)
    kload(g, ("K", 1), V_KB, S_NK, sK)
    kload(g, ("V", 1), V_VB, S_NV, sV)
    A(f"s_lshl_b32 s6, s{S_F}, 4")
    A(f"s_cmp_lt_u32 s{S_F}, 172")
    A(f"s_cselect_b32 s6, s6, {hex(BIG)}")
    A(f"v_mul_u32_u24 v{V_OGU}, 2752, v0")
    A(f"v_add_u32 v{V_OGU}, s6, v{V_OGU}")
    g.vm("gu", f"buffer_load_dwordx4 {vr(V_GU,4)}, v{V_OGU}, {srd(sG)}, 0 offen")
    g.vm("gu", f"buffer_load_dwordx4 {vr(V_GU+4,4)}, v{V_OGU}, {srd(sU)}, 0 offen")
    for e in range(8):
        so = "0" if e < 4 else f"s{S_4096}"
        g.vm("wd", f"buffer_load_dwordx2 {vr(V_WD+2*e,2)}, v{V_OWD}, {srd(sD)}, {so} offen offset:{(e&3)*1024}")
    g.C("MFMA selection masks")
    A(f"v_and_b32 v3, 1, v12")
    A(f"v_mov_b32 v4, 0xffff")
    A(f"v_mov_b32 v5, 0xffff0000")
    A(f"v_cmp_eq_u32 vcc, 1, v3")
    A(f"v_lshrrev_b32 v6, 1, v12")
    for j in range(4):
        A(f"v_cmp_eq_u32_e64 s[{52+2*j}:{53+2*j}], {j}, v6")
    A(f"v_cndmask_b32 v4, v4, v5, vcc")
    for j in range(4):
        A(f"v_cndmask_b32_e64 v{V_MASK+j}, 0, v4, s[{52+2*j}:{53+2*j}]")
    g.C("layernorm")
    XF = V_F
    DD = V_F + 8
    g.wait("x")
    for j in range(4):
        A(f"v_lshlrev_b32 v{XF+2*j}, 16, v{V_X+j}")
        A(f"v_and_b32 v{XF+2*j+1}, 0xffff0000, v{V_X+j}")
    A(f"v_add_f32 v3, v{XF}, v{XF+1}")
    A(f"v_add_f32 v4, v{XF+2}, v{XF+3}")
    A(f"v_add_f32 v5, v{XF+4}, v{XF+5}")
    A(f"v_add_f32 v6, v{XF+6}, v{XF+7}")
    A(f"v_add_f32 v3, v3, v4")
    A(f"v_add_f32 v5, v5, v6")
    A(f"v_add_f32 v3, v3, v5")
    g.row_allreduce([3])
    g.nop(1)
    g.xrow_allreduce(3, 4)
    A(f"v_mul_f32 v3, {hex(f2u(1.0/512))}, v3")
    for e in range(8):
        A(f"v_sub_f32 v{DD+e}, v{XF+e}, v3")
    A(f"v_mul_f32 v5, v{DD}, v{DD}")
    for e in range(1, 8):
        A(f"v_fmac_f32 v5, v{DD+e}, v{DD+e}")
    g.row_allreduce([5])
    g.nop(1)
    g.xrow_allreduce(5, 4)
    A(f"v_mul_f32 v5, {hex(f2u(1.0/512))}, v5")
    bf16_round(g, 3, 3)
    bf16_round(g, 5, 5)
    A(f"v_add_f32 v5, {hex(f2u(1e-5))}, v5")
    bf16_round(g, 5, 5)
    A(f"v_sqrt_f32 v5, v5")
    g.nop(1)
    bf16_round(g, 5, 5)
    A(f"v_rcp_f32 v6, v5")
    for e in range(8):
        A(f"v_sub_f32 v{DD+e}, v{XF+e}, v3")
    for e in range(8):
        bf16_round(g, DD+e, DD+e)
    for e in range(8):
        A(f"v_mul_f32 v{XF+e}, v{DD+e}, v6")
    for e in range(8):
        A(f"v_fma_f32 v{DD+e}, -v{XF+e}, v5, v{DD+e}")
    for e in range(8):
        A(f"v_fmac_f32 v{XF+e}, v{DD+e}, v6")
    PPX = V_A
    for e in range(8):
        A(f"v_cvt_pk_bf16_f32 v{PPX+2*(e&3)+(e>>2)}, v{XF+e}, v{XF+e}")
    A(f"v_lshrrev_b32 v3, 3, v{V_LANE}")
    A(f"v_lshlrev_b32 v3, 8, v3")
    A(f"v_and_b32 v4, 7, v{V_LANE}")
    A(f"v_lshl_add_u32 v3, v4, 3, v3")
    A(f"s_lshl_b32 s6, s{S_W}, 3")
    A(f"s_lshl_b64 exec, 0xff, s6")
    for r in range(4):
        A(f"ds_write_b64 v3, {vr(PPX+2*r,2)} offset:{L_XS + r*64}")
    A("s_mov_b64 exec, -1")
    A(f"s_lshl_b32 s6, s{S_W}, 8")
    A(f"v_lshl_add_u32 v3, v11, 6, s6")
    A(f"v_and_b32 v4, 3, v{V_LANE}")
    A(f"v_lshlrev_b32 v4, 6, v4")
    A(f"v_lshrrev_b32 v5, 2, v{V_LANE}")
    A(f"v_lshl_add_u32 v4, v5, 2, v4")
    A(f"v_add_u32 v4, s6, v4")
    A("s_waitcnt lgkmcnt(0)")
    XA = V_F
    for k in range(4):
        A(f"ds_read_b128 {vr(XA+4*k,4)}, v3 offset:{L_XS + 16*k}")
    A(f"ds_read_b32 v{V_XROW}, v4 offset:{L_XS}")
    A("s_waitcnt lgkmcnt(0)")
    g.C("q partial MFMAs")
    QA = V_ACC
    def ands(i):
        for j in range(4):
            A(f"v_and_b32 v{V_A+4*(i&3)+j}, v{XA+i}, v{V_MASK+j}")
    ands(0)
    for i in range(16):
        if i < 15: ands(i+1)
        else: g.nop(2)
        if i % 4 == 0: g.wait(("wq", i+3))
        c = "0" if i == 0 else vr(QA,4)
        A(f"v_mfma_f32_16x16x32_bf16 {vr(QA,4)}, {vr(V_A+4*(i&3),4)}, {vr(V_W+4*i,4)}, {c}")
    A(f"s_lshl_b32 s6, s{S_W}, 9")
    A(f"v_lshlrev_b32 v3, 5, v12")
    A(f"v_lshl_add_u32 v3, v11, 4, v3")
    A(f"v_add_u32 v3, s6, v3")
    A("s_mov_b32 exec_hi, 0")
    g.nop(8)
    A(f"ds_write_b128 v3, {vr(QA,4)} offset:{L_QP}")
    A("s_mov_b32 exec_hi, -1")
    A(f"v_lshlrev_b32 v3, 5, v12")
    A(f"v_lshl_add_u32 v3, v11, 3, v3")
    A("s_waitcnt lgkmcnt(0)")
    A("s_barrier")
    g.stamp(1)
    A(f"v_mov_b32 v4, 1")
    g.vm("atom", f"buffer_atomic_add v4, v{V_ODBG}, {srd(sDBG)}, 0 offen sc1")
    QR = V_F
    for w in range(8):
        A(f"ds_read_b64 {vr(QR+2*w,2)}, v3 offset:{L_QP + 512*w}")
    A(f"v_mov_b32 v{V_M}, 0xff800000")
    A(f"v_mov_b32 v{V_MC}, 0")
    A(f"v_mov_b32 v{V_L}, 0")
    for j in range(4): A(f"v_mov_b32 v{V_ACC+j}, 0")
    A("s_waitcnt lgkmcnt(0)")
    for h in range(2):
        A(f"v_add_f32 v{QR+h}, v{QR+h}, v{QR+2+h}")
        A(f"v_add_f32 v{QR+4+h}, v{QR+4+h}, v{QR+6+h}")
        A(f"v_add_f32 v{QR+8+h}, v{QR+8+h}, v{QR+10+h}")
        A(f"v_add_f32 v{QR+12+h}, v{QR+12+h}, v{QR+14+h}")
    for h in range(2):
        A(f"v_add_f32 v{QR+h}, v{QR+h}, v{QR+4+h}")
        A(f"v_add_f32 v{QR+8+h}, v{QR+8+h}, v{QR+12+h}")
    for h in range(2):
        A(f"v_add_f32 v{QR+h}, v{QR+h}, v{QR+8+h}")
    Q0, Q1, Q2, Q3 = V_Q, V_Q+1, V_Q+2, V_Q+3
    A(f"v_cvt_pk_bf16_f32 v{Q0}, v{QR}, v{QR+1}")
    g.nop(1)
    A(f"v_mov_b32 v{Q1}, v{Q0}")
    g.nop(2)
    A(f"v_permlane16_swap_b32 v{Q0}, v{Q1}")
    g.nop(1)
    A(f"v_mov_b32 v{Q2}, v{Q0}")
    A(f"v_mov_b32 v{Q3}, v{Q1}")
    g.nop(2)
    A(f"v_permlane32_swap_b32 v{Q0}, v{Q2}")
    A(f"v_permlane32_swap_b32 v{Q1}, v{Q3}")
    g.nop(2)
    unit(g, "a0", V_KA, V_VA, 0, True)
    unit(g, "b1", V_KB, V_VB, 1, True)
    g.C("wo prefetch")
    A(f"s_lshl_b32 s6, s{S_H}, 17")
    A(f"s_lshl_b32 s7, s{S_W}, 14")
    A(f"s_add_u32 s6, s6, s7")
    for ii in range(4):
        for gg in range(4):
            g.vm("wo", f"buffer_load_dwordx4 {vr(V_W+16*ii+4*gg,4)}, v{V_OWO}, {srd(sWO)}, s6 offen offset:{gg*256}")
        if ii < 3: A("s_add_u32 s6, s6, 0x1000")
    g.C("FFN partial")
    A(f"s_cmp_lt_u32 s{S_F}, 172")
    A("s_cbranch_scc0 L_ffn_done")
    g.wait("gu", "wd")
    A(f"v_and_b32 v3, 0xffff, v{V_XROW}")
    A(f"v_and_b32 v4, 0xffff0000, v{V_XROW}")
    for m in range(2):
        for j in range(4):
            A(f"v_dot2_f32_bf16 v{V_F+8*m+2*j}, v{V_GU+4*m+j}, v3, 0")
            A(f"v_dot2_f32_bf16 v{V_F+8*m+2*j+1}, v{V_GU+4*m+j}, v4, 0")
    g.nop(3)
    g.row_allreduce([V_F+k for k in range(16)])
    A(f"s_lshl_b32 s6, s{S_W}, 8")
    A(f"v_lshrrev_b32 v3, 4, v{V_LANE}")
    A(f"v_lshl_add_u32 v3, v3, 6, s6")
    A("s_mov_b32 exec_lo, 0x00010001")
    A("s_mov_b32 exec_hi, 0x00010001")
    for k in range(4):
        A(f"ds_write_b128 v3, {vr(V_F+4*k,4)} offset:{L_GP+16*k}")
    A("s_mov_b64 exec, -1")
    A("s_waitcnt lgkmcnt(0)")
    A("s_barrier")
    A(f"s_cmp_lt_u32 s{S_W}, 2")
    A("s_cbranch_scc0 L_ffn_done")
    g.C("FFN finish (waves 0,1)")
    A(f"v_lshlrev_b32 v3, 9, v{V_R}")
    A(f"v_lshl_add_u32 v3, v{V_C}, 2, v3")
    A(f"v_add_u32 v3, {L_GP}, v3")
    for k in range(4):
        A(f"ds_read2_b32 {vr(V_F+2*k,2)}, v3 offset0:{32*k} offset1:{32*k+16}")
    A("s_waitcnt lgkmcnt(0)")
    for k in range(4):
        A(f"v_add_f32 v{V_F+2*k}, v{V_F+2*k}, v{V_F+2*k+1}")
    A(f"v_add_f32 v{V_F}, v{V_F}, v{V_F+2}")
    A(f"v_add_f32 v{V_F+4}, v{V_F+4}, v{V_F+6}")
    A(f"v_add_f32 v{V_F}, v{V_F}, v{V_F+4}")
    g.nop(1)
    g.xrow_allreduce(V_F, 3)
    bf16_round(g, V_F, V_F)
    silu(g, 5, V_F, 4)
    bf16_round(g, 5, 5)
    A(f"v_mov_b32_dpp v6, v{V_F} row_ror:8 row_mask:0xf bank_mask:0xf")
    A(f"v_mul_f32 v5, v5, v6")
    bf16_round(g, 5, 5)
    g.nop(1)
    for e in range(8):
        A(f"v_readlane_b32 s{S_H0+e}, v5, {e}")
    for e in range(8):
        A(f"s_lshr_b32 s{S_H0+8+e}, s{S_H0+e}, 16")
    Y = V_F + 4
    for e in range(8):
        for h2 in range(2):
            c0 = "0" if e == 0 else f"v{Y+2*h2}"
            c1 = "0" if e == 0 else f"v{Y+2*h2+1}"
            A(f"v_dot2_f32_bf16 v{Y+2*h2}, v{V_WD+2*e+h2}, s{S_H0+8+e}, {c0}")
            A(f"v_dot2_f32_bf16 v{Y+2*h2+1}, v{V_WD+2*e+h2}, s{S_H0+e}, {c1}")
    g.nop(3)
    g.lab("L_ffn_done")
    g.vm("yst", f"buffer_store_dwordx4 {vr(V_F+4,4)}, v{V_OY}, {srd(sWS)}, 0 offen sc1")
    g.stamp(2)
    unit(g, "a2", V_KA, V_VA, 2, True)
    unit(g, "b3", V_KB, V_VB, 3, True)
    A(f"s_mov_b32 s{S_CNT}, 13")
    g.lab("L_loop")
    assert g.q[-16:] == [("K",4)]*4 + [("V",4)]*4 + [("K",5)]*4 + [("V",5)]*4, g.q
    unit(g, "la", V_KA, V_VA, 4, True)
    unit(g, "lb", V_KB, V_VB, 5, True)
    assert g.q[-16:] == [("K",6)]*4 + [("V",6)]*4 + [("K",7)]*4 + [("V",7)]*4, g.q
    A(f"s_sub_u32 s{S_CNT}, s{S_CNT}, 1")
    A(f"s_cmp_lg_u32 s{S_CNT}, 0")
    A("s_cbranch_scc1 L_loop")
    g.q = [("K",30)]*4 + [("V",30)]*4 + [("K",31)]*4 + [("V",31)]*4
    g.stamp(3)
    unit(g, "a30", V_KA, V_VA, 30, False)
    unit(g, "b31", V_KB, V_VB, 31, False)
    assert g.q == []
    g.C("tail")
    g.xrow_allreduce(V_L, 3)
    A(f"s_mul_i32 s6, s{S_W}, 528")
    A(f"v_lshrrev_b32 v3, 1, v{V_C}")
    A(f"v_lshlrev_b32 v3, 6, v3")
    A(f"v_and_b32 v4, 1, v{V_C}")
    A(f"v_lshl_add_u32 v3, v4, 3, v3")
    A(f"v_lshl_add_u32 v3, v{V_R}, 2, v3")
    A(f"v_add_u32 v3, s6, v3")
    A(f"v_mov_b32 v4, v{V_M}")
    A(f"v_mov_b32 v5, v{V_L}")
    A(f"s_lshl_b32 s7, s{S_W}, 3")
    A(f"v_mov_b32 v6, s7")
    A("s_mov_b32 exec_hi, 0")
    for jj in range(4):
        A(f"ds_write_b32 v3, v{V_ACC+jj} offset:{L_OW + 16*jj}")
    A("s_mov_b64 exec, 1")
    A(f"ds_write_b64 v6, v[4:5] offset:{L_ML}")
    A("s_mov_b64 exec, -1")
    A(f"v_and_b32 v7, 7, v{V_C}")
    A(f"v_mul_u32_u24 v3, 528, v7")
    A(f"v_lshl_add_u32 v3, v{V_R}, 4, v3")
    A(f"s_lshl_b32 s6, s{S_W}, 6")
    A(f"v_add_u32 v3, s6, v3")
    A(f"v_lshlrev_b32 v7, 3, v7")
    A("s_waitcnt lgkmcnt(0)")
    A("s_barrier")
    g.stamp(4)
    O4 = V_S
    A(f"ds_read_b128 {vr(O4,4)}, v3 offset:{L_OW}")
    A(f"ds_read_b64 v[4:5], v7 offset:{L_ML}")
    A("s_waitcnt lgkmcnt(0)")
    A(f"v_mov_b32 v6, v4")
    g.row_allreduce([6], op="v_max_f32_dpp", levels=(4, 2, 1))
    A(f"v_sub_f32 v4, v4, v6")
    A(f"v_mul_f32 v4, s{S_C}, v4")
    A(f"v_exp_f32 v4, v4")
    A(f"v_mul_f32 v8, s{S_C}, v6")
    A(f"v_mul_f32 v9, v5, v4")
    for k in range(4):
        A(f"v_mul_f32 v{O4+k}, v{O4+k}, v4")
    g.row_allreduce([9, O4, O4+1, O4+2, O4+3], levels=(4, 2, 1))
    for k in range(4):
        A(f"v_cvt_pk_bf16_f32 v{V_PP+k}, v{O4+k}, v{O4+k}")
    g.vm("mlst", f"buffer_store_dwordx2 v[8:9], v{V_OML}, {srd(sWS)}, 0 offen sc1")
    for ii in range(4):
        for j in range(4):
            A(f"v_and_b32 v{V_A+4*ii+j}, v{V_PP+ii}, v{V_MASK+j}")
    TA = V_KA
    g.nop(2)
    for ii in range(4):
        for gg in range(4):
            c = "0" if ii == 0 else vr(TA+4*gg,4)
            A(f"v_mfma_f32_16x16x32_bf16 {vr(TA+4*gg,4)}, {vr(V_A+4*ii,4)}, {vr(V_W+16*ii+4*gg,4)}, {c}")
    A(f"s_lshl_b32 s6, s{S_W}, 11")
    A(f"v_lshlrev_b32 v3, 5, v{V_C}")
    A(f"v_lshl_add_u32 v3, v{V_R}, 4, v3")
    A(f"v_add_u32 v3, s6, v3")
    A("s_mov_b32 exec_hi, 0")
    g.nop(5)
    for gg in range(4):
        if gg == 3: g.nop(4)
        A(f"ds_write_b128 v3, {vr(TA+4*gg,4)} offset:{L_TP + 512*gg}")
    A("s_mov_b32 exec_hi, -1")
    A(f"v_lshlrev_b32 v3, 4, v0")
    A("s_waitcnt lgkmcnt(0)")
    A("s_barrier")
    A(f"s_cmp_lt_u32 s{S_W}, 2")
    A("s_cbranch_scc0 L_after_T")
    TR = V_VA
    for w in range(8):
        A(f"ds_read_b128 {vr(TR+4*w,4)}, v3 offset:{L_TP + 2048*w}")
    for w in (0, 2, 4, 6):
        A(f"s_waitcnt lgkmcnt({6-w})")
        for k in range(4):
            A(f"v_add_f32 v{TR+4*w+k}, v{TR+4*w+k}, v{TR+4*(w+1)+k}")
    for k in range(4):
        A(f"v_add_f32 v{TR+k}, v{TR+k}, v{TR+8+k}")
    for k in range(4):
        A(f"v_add_f32 v{TR+16+k}, v{TR+16+k}, v{TR+24+k}")
    for k in range(4):
        A(f"v_add_f32 v{TR+k}, v{TR+k}, v{TR+16+k}")
    A(f"buffer_store_dwordx4 {vr(TR,4)}, v{V_OT}, {srd(sWS)}, 0 offen sc1")
    g.lab("L_after_T")
    g.stamp(5)
    A("s_and_b32 s6, s2, 1")
    A("s_lshr_b32 s7, s2, 3")
    A("s_cmp_lt_u32 s7, 8")
    A("s_cselect_b32 s3, 0, 1")
    A("s_or_b32 s6, s6, s3")
    A("s_cmp_eq_u32 s6, 0")
    A("s_cbranch_scc0 L_exit")
    g.C("reader phase")
    A("s_and_b32 s6, s2, 7")
    A("s_lshr_b32 s6, s6, 1")
    A("s_lshl_b32 s7, s7, 2")
    A("s_add_u32 s6, s6, s7")
    A("s_lshl_b32 s7, s6, 14")
    A(f"v_lshlrev_b32 v3, 4, v0")
    A(f"v_add_u32 v3, s7, v3")
    A(f"v_add_u32 v4, {hex(WS_Y)}, v3")
    A(f"v_add_u32 v5, {hex(WS_Y + 8192)}, v3")
    A(f"v_mov_b32 v6, {hex(BIG)}")
    A(f"v_cmp_gt_u32 vcc, 176, v0")
    A(f"v_add_u32 v7, 0x2000, v3")
    A(f"v_lshrrev_b32 v8, 2, v0")
    A(f"v_cndmask_b32 v5, v6, v5, vcc")
    A(f"v_lshlrev_b32 v8, 3, v8")
    A(f"v_add_u32 v8, {hex(WS_ML)}, v8")
    A(f"s_lshl_b32 s6, s6, 5")
    A(f"v_lshl_add_u32 v9, v{V_C}, 1, s6")
    A(f"v_and_b32 v10, 3, v{V_LANE}")
    A(f"v_lshlrev_b32 v10, 6, v10")
    XV = V_X
    A(f"buffer_load_ushort v{XV}, v9, {srd(sX)}, 0 offen")
    A(f"s_mov_b32 s{S_CNT}, {SPIN}")
    g.lab("L_poll0")
    A(f"buffer_load_dword v13, v10, {srd(sDBG)}, 0 offen sc1")
    A("s_waitcnt vmcnt(0)")
    A("v_cmp_ne_u32 vcc, 64, v13")
    A("s_cbranch_vccz L_poll0_ok")
    A("s_sleep 8")
    A(f"s_sub_u32 s{S_CNT}, s{S_CNT}, 1")
    A(f"s_cmp_lg_u32 s{S_CNT}, 0")
    A("s_cbranch_scc1 L_poll0")
    g.lab("L_poll0_ok")
    MA, MB = V_S, V_S+2
    A(f"s_mov_b32 s{S_CNT}, {SPIN}")
    g.lab("L_poll1")
    A(f"buffer_load_dwordx2 {vr(MA,2)}, v8, {srd(sWS)}, 0 offen sc1")
    A(f"buffer_load_dwordx2 {vr(MB,2)}, v8, {srd(sWS)}, 0 offen offset:1024 sc1")
    A("s_waitcnt vmcnt(0)")
    A(f"v_max3_u32 v13, v{MA}, v{MA+1}, v{MB}")
    A(f"v_max_u32 v13, v13, v{MB+1}")
    A("v_cmp_eq_u32 vcc, -1, v13")
    A("s_cbranch_vccz L_poll1_ok")
    A("s_sleep 2")
    A(f"s_sub_u32 s{S_CNT}, s{S_CNT}, 1")
    A(f"s_cmp_lg_u32 s{S_CNT}, 0")
    A("s_cbranch_scc1 L_poll1")
    g.lab("L_poll1_ok")
    RA, RB, YA, YB = V_KA, V_KA+4, V_KA+8, V_KA+12
    A(f"s_mov_b32 s{S_CNT}, {SPIN}")
    g.lab("L_poll2")
    A(f"buffer_load_dwordx4 {vr(RA,4)}, v3, {srd(sWS)}, 0 offen sc1")
    A(f"buffer_load_dwordx4 {vr(RB,4)}, v7, {srd(sWS)}, 0 offen sc1")
    A(f"buffer_load_dwordx4 {vr(YA,4)}, v4, {srd(sWS)}, 0 offen sc1")
    A(f"buffer_load_dwordx4 {vr(YB,4)}, v5, {srd(sWS)}, 0 offen sc1")
    WA, WB = V_P, V_P+1
    EA, EB = V_P+2, V_P+3
    A(f"v_mov_b32 v{EA}, v{MA}")
    A(f"v_mov_b32 v{EB}, v{MB}")
    g.row_allreduce([EA, EB], op="v_max_f32_dpp", levels=(4, 8))
    def half_xrow(d, t, op):
        A(f"v_mov_b32 v{t}, v{d}")
        g.nop(2)
        A(f"v_permlane16_swap_b32 v{d}, v{t}")
        g.nop(1)
        A(f"{op} v{d}, v{d}, v{t}")
    g.nop(1)
    half_xrow(EA, 13, "v_max_f32")
    half_xrow(EB, 14, "v_max_f32")
    A(f"v_sub_f32 v{EA}, v{MA}, v{EA}")
    A(f"v_sub_f32 v{EB}, v{MB}, v{EB}")
    A(f"v_exp_f32 v{EA}, v{EA}")
    A(f"v_exp_f32 v{EB}, v{EB}")
    g.nop(1)
    A(f"v_mul_f32 v{WA}, v{EA}, v{MA+1}")
    A(f"v_mul_f32 v{WB}, v{EB}, v{MB+1}")
    g.row_allreduce([WA, WB], levels=(4, 8))
    g.nop(1)
    half_xrow(WA, 13, "v_add_f32")
    half_xrow(WB, 14, "v_add_f32")
    A(f"v_rcp_f32 v{WA}, v{WA}")
    A(f"v_rcp_f32 v{WB}, v{WB}")
    g.nop(1)
    A(f"v_mul_f32 v{WA}, v{WA}, v{EA}")
    A(f"v_mul_f32 v{WB}, v{WB}, v{EB}")
    A("s_waitcnt vmcnt(0)")
    regs = [RA+k for k in range(16)]
    A(f"v_max3_u32 v13, v{regs[0]}, v{regs[1]}, v{regs[2]}")
    for k in range(3, 15, 2):
        A(f"v_max3_u32 v13, v13, v{regs[k]}, v{regs[k+1]}")
    A(f"v_max_u32 v13, v13, v{regs[15]}")
    A("v_cmp_eq_u32 vcc, -1, v13")
    A("s_cbranch_vccz L_poll2_ok")
    A(f"s_sub_u32 s{S_CNT}, s{S_CNT}, 1")
    A(f"s_cmp_lg_u32 s{S_CNT}, 0")
    A("s_cbranch_scc1 L_poll2")
    g.lab("L_poll2_ok")
    g.stamp(6)
    for k in range(4):
        A(f"v_mul_f32 v{RA+k}, v{RA+k}, v{WA}")
    for k in range(4):
        A(f"v_fmac_f32 v{RA+k}, v{RB+k}, v{WB}")
    for k in range(4):
        A(f"v_add_f32 v{YA+k}, v{YA+k}, v{YB+k}")
    g.row_allreduce([RA, RA+1, RA+2, RA+3, YA, YA+1, YA+2, YA+3], levels=(4, 8))
    g.nop(1)
    for b in (RA, YA):
        A(f"v_permlane16_swap_b32 v{b}, v{b+1}")
        A(f"v_permlane16_swap_b32 v{b+2}, v{b+3}")
    g.nop(1)
    for b in (RA, YA):
        A(f"v_add_f32 v{b}, v{b}, v{b+1}")
        A(f"v_add_f32 v{b+2}, v{b+2}, v{b+3}")
    g.nop(2)
    for b in (RA, YA):
        A(f"v_permlane32_swap_b32 v{b}, v{b+2}")
    g.nop(1)
    for b in (RA, YA):
        A(f"v_add_f32 v{b}, v{b}, v{b+2}")
    A(f"s_lshl_b32 s6, s{S_W}, 7")
    A(f"v_lshlrev_b32 v3, 4, v{V_C}")
    A(f"v_lshl_add_u32 v3, v{V_R}, 2, v3")
    A(f"v_add_u32 v3, s6, v3")
    A("s_mov_b32 exec_lo, 0x000f000f")
    A("s_mov_b32 exec_hi, 0x000f000f")
    A(f"ds_write_b32 v3, v{RA} offset:{L_RD}")
    A(f"ds_write_b32 v3, v{YA} offset:{L_RD+64}")
    A("s_mov_b64 exec, -1")
    A(f"v_lshlrev_b32 v3, 2, v{V_C}")
    A(f"v_add_u32 v3, {L_RD}, v3")
    A("s_waitcnt lgkmcnt(0)")
    A("s_barrier")
    A(f"s_cmp_eq_u32 s{S_W}, 0")
    A("s_cbranch_scc0 L_exit")
    FR = V_VA
    for w in range(8):
        A(f"ds_read2_b32 {vr(FR+2*w,2)}, v3 offset0:{32*w} offset1:{32*w+16}")
    A(f"v_lshlrev_b32 v{XV}, 16, v{XV}")
    A("s_waitcnt lgkmcnt(0)")
    for h in range(2):
        for w in (0, 2, 4, 6):
            A(f"v_add_f32 v{FR+2*w+h}, v{FR+2*w+h}, v{FR+2*(w+1)+h}")
    for h in range(2):
        A(f"v_add_f32 v{FR+h}, v{FR+h}, v{FR+4+h}")
        A(f"v_add_f32 v{FR+8+h}, v{FR+8+h}, v{FR+12+h}")
    for h in range(2):
        A(f"v_add_f32 v{FR+h}, v{FR+h}, v{FR+8+h}")
    bf16_round(g, FR, FR)
    bf16_round(g, FR+1, FR+1)
    silu(g, 5, FR+1, 4)
    bf16_round(g, 5, 5)
    A(f"v_mul_f32 v5, v{FR}, v5")
    bf16_round(g, 5, 5)
    A(f"v_add_f32 v5, v{XV}, v5")
    A(f"v_cvt_pk_bf16_f32 v5, v5, v5")
    A("s_mov_b64 exec, 0xffff")
    A(f"buffer_store_short v5, v9, {srd(sOUT)}, 0 offen")
    g.lab("L_exit")
    if prof:
        g.stamp(7)
        A("s_mov_b64 exec, 1")
        A(f"s_lshl_b32 s6, s2, 3")
        A(f"s_add_u32 s6, s6, s{S_W}")
        A(f"s_lshl_b32 s6, s6, 5")
        A(f"s_add_u32 s6, s6, {hex(WS_STAMP)}")
        A(f"v_mov_b32 v3, s6")
        A(f"buffer_store_dwordx4 v[240:243], v3, {srd(sWS)}, 0 offen")
        A(f"buffer_store_dwordx4 v[244:247], v3, {srd(sWS)}, 0 offen offset:16")
    g.lab("L_end")
    A("s_endpgm")
    L.extend(g.ool)
    nv = 248 if prof else NVGPR
    L.append('.section .rodata,"a"')
    L.append(".p2align 6")
    L.append(f".amdhsa_kernel {KN}")
    L.append(f"  .amdhsa_next_free_vgpr {nv}")
    L.append("  .amdhsa_next_free_sgpr 102")
    L.append(f"  .amdhsa_accum_offset {(nv+3)//4*4}")
    L.append("  .amdhsa_group_segment_fixed_size 0")
    L.append("  .amdhsa_kernarg_size 96")
    L.append("  .amdhsa_user_sgpr_count 2")
    L.append("  .amdhsa_user_sgpr_kernarg_segment_ptr 1")
    L.append("  .amdhsa_system_sgpr_workgroup_id_x 1")
    L.append(".end_amdhsa_kernel")
    return "\n".join(L) + "\n"

if __name__ == "__main__":
    prof = "--prof" in sys.argv
    out = [a for a in sys.argv[1:] if not a.startswith("--")]
    s = build(prof)
    if out: open(out[0], "w").write(s)
    else: sys.stdout.write(s)
```

```python
import sys, struct

KN = "recurrent_scan__mha_block_cached__swiglu_ffn__decode_kernel"

def f2u(x):
    return struct.unpack("<I", struct.pack("<f", x))[0]

LOG2E = 1.4426950408889634
C_SCALE = LOG2E / (128.0 ** 0.5)
BIG = 0x80000000

L_QP = 0
L_OW = 2048
L_ML = 4608
L_G = 4640
L_RD = 4736
LDS_SIZE = 5376

WS_T = 0
WS_Y = 0x80000
WS_ML = 0x100000
WS_SIZE = 0x200000
WS_STAMP = 0x400000

sK, sV, sWQ, sWO, sX, sG, sU, sD, sWS, sOUT, sDBG = 8, 12, 16, 20, 24, 28, 32, 36, 40, 44, 48
S_W, S_H, S_J, S_P = 76, 77, 78, 79
S_NK, S_NV = 80, 81
S_CNT = 82
S_C = 83
S_F = 84
S_PH = 85
S_H0 = 86
S_RHO = 86
def srd(b): return f"s[{b}:{b+3}]"

V_LANE, V_L16 = 1, 2
V_R, V_C = 11, 12
V_MASK = 16
V_ACC = 24
V_A = 40
V_Q = 20
V_M, V_MC, V_L, V_MX = 28, 29, 30, 31
V_S = 32
V_P, V_PP = 36, 37
V_OFF = 38
V_K = 56
V_X0, V_X1, V_XA, V_XB = 20, 21, 22, 23
V_MEAN, V_SD, V_RC = 28, 29, 30
V_X = 56
V_XF = 60
V_DD = 68
V_OT, V_OY, V_OML, V_OWQ, V_OWO, V_ODBG, V_OGU, V_OWD = 76, 77, 78, 79, 80, 81, 82, 83
V_GU = 84
V_FA = 100
V_ST = 120

def vr(b, n=1):
    return f"v{b}" if n == 1 else f"v[{b}:{b+n-1}]"
def ar(b, n=1):
    return f"a{b}" if n == 1 else f"a[{b}:{b+n-1}]"
FULL = "row_mask:0xf bank_mask:0xf"

class Gen:
    def __init__(self, prof=False):
        self.L = []
        self.q = []
        self.prof = prof
        self.ool = []
    def A(self, s): self.L.append("    " + s)
    def lab(self, s): self.L.append(s + ":")
    def C(self, s): self.L.append("    ; " + s)
    def vm(self, tag, s):
        self.A(s); self.q.append(tag)
    def wait(self, *tags):
        last = -1
        for i, t in enumerate(self.q):
            if t in tags: last = i
        if last < 0:
            return
        n = len(self.q) - 1 - last
        assert n <= 63, n
        self.A(f"s_waitcnt vmcnt({n})")
        self.q = self.q[last+1:]
    def waitall(self):
        self.A("s_waitcnt vmcnt(0)")
        self.q = []
    def nop(self, n):
        while n > 0:
            k = min(n, 16)
            self.A(f"s_nop {k-1}")
            n -= k
    def dpp_add(self, d, ctrl, op="v_add_f32_dpp"):
        self.A(f"{op} v{d}, v{d}, v{d} {ctrl} {FULL}")
    def xrow_allreduce(self, d, t, op="v_add_f32"):
        self.A(f"v_mov_b32 v{t}, v{d}")
        self.nop(2)
        self.A(f"v_permlane16_swap_b32 v{d}, v{t}")
        self.nop(1)
        self.A(f"{op} v{d}, v{d}, v{t}")
        self.nop(1)
        self.A(f"v_mov_b32 v{t}, v{d}")
        self.nop(2)
        self.A(f"v_permlane32_swap_b32 v{d}, v{t}")
        self.nop(1)
        self.A(f"{op} v{d}, v{d}, v{t}")
    def row_allreduce(self, regs, op="v_add_f32_dpp", levels=(8, 4, 2, 1)):
        for lv in levels:
            if len(regs) < 3: self.nop(3 - len(regs))
            for d in regs: self.dpp_add(d, f"row_ror:{lv}", op)
    def stamp(self, idx):
        if not self.prof: return
        self.A("s_memrealtime s[4:5]")
        self.A("s_waitcnt lgkmcnt(0)")
        self.A(f"v_mov_b32 v{V_ST+idx}, s4")
    def setsrd(self, b, k, n):
        self.A(f"s_mov_b32 s{b}, s{52+2*k}")
        self.A(f"s_and_b32 s{b+1}, s{53+2*k}, 0xffff")
    def srdsz(self, b, n):
        self.A(f"s_mov_b32 s{b+2}, {hex(n)}")
        self.A(f"s_mov_b32 s{b+3}, 0x20000")

def bf16_round(g, d, s):
    g.A(f"v_cvt_pk_bf16_f32 v{d}, v{s}, v{s}")
    g.A(f"v_and_b32 v{d}, 0xffff0000, v{d}")

def silu(g, d, x, t0):
    g.A(f"v_mul_f32 v{t0}, {hex(f2u(-LOG2E))}, v{x}")
    g.A(f"v_exp_f32 v{t0}, v{t0}")
    g.nop(1)
    g.A(f"v_add_f32 v{t0}, 1.0, v{t0}")
    g.A(f"v_rcp_f32 v{t0}, v{t0}")
    g.nop(1)
    g.A(f"v_mul_f32 v{d}, v{x}, v{t0}")

def col_reduce(g, R):
    A = g.A
    g.row_allreduce([R, R+1, R+2, R+3], levels=(4, 8))
    g.nop(1)
    A(f"v_permlane32_swap_b32 v{R}, v{R+2}")
    A(f"v_permlane32_swap_b32 v{R+1}, v{R+3}")
    g.nop(1)
    A(f"v_add_f32 v{R}, v{R}, v{R+2}")
    A(f"v_add_f32 v{R+1}, v{R+1}, v{R+3}")
    g.nop(2)
    A(f"v_permlane16_swap_b32 v{R}, v{R+1}")
    g.nop(1)
    A(f"v_add_f32 v{R}, v{R}, v{R+1}")

def kload1(g, tag, base, t, srdb, sreg, acc=False):
    r = ar(base+4*t, 4) if acc else vr(base+4*t, 4)
    g.vm(tag, f"buffer_load_dwordx4 {r}, v{V_OFF}, {srd(srdb)}, s{sreg} offen offset:{t*1024} nt")

TSRC = [0, 8, 4, 12]

def unit(g, u, D, STEP):
    A = g.A
    kb = V_K + 16*u
    vb = 16*u
    g.C(f"---- unit {u}")
    A(f"s_waitcnt vmcnt({8*D-4})")
    for j in range(4):
        for t in range(4):
            c = "0" if j == 0 else f"v{V_S+t}"
            A(f"v_dot2_f32_bf16 v{V_S+t}, v{kb+4*t+j}, v{V_Q+j}, {c}")
    for t in range(3): kload1(g, "K", kb, t, sK, S_NK)
    S0, S1, S2, S3 = V_S, V_S+1, V_S+2, V_S+3
    A(f"v_add_f32_dpp v{S0}, v{S0}, v{S0} row_ror:8 row_mask:0xf bank_mask:0x3")
    A(f"v_add_f32_dpp v{S0}, v{S1}, v{S1} row_ror:8 row_mask:0xf bank_mask:0xc")
    A(f"v_add_f32_dpp v{S2}, v{S2}, v{S2} row_ror:8 row_mask:0xf bank_mask:0x3")
    A(f"v_add_f32_dpp v{S2}, v{S3}, v{S3} row_ror:8 row_mask:0xf bank_mask:0xc")
    kload1(g, "K", kb, 3, sK, S_NK)
    A(f"v_add_f32_dpp v{S1}, v{S0}, v{S0} row_half_mirror row_mask:0xf bank_mask:0x5")
    A(f"v_add_f32_dpp v{S1}, v{S2}, v{S2} row_half_mirror row_mask:0xf bank_mask:0xa")
    A(f"s_add_u32 s{S_NK}, s{S_NK}, {hex(STEP)}")
    g.nop(1)
    A(f"v_add_f32_dpp v{S1}, v{S1}, v{S1} quad_perm:[1,0,3,2] {FULL}")
    g.nop(2)
    A(f"v_add_f32_dpp v{S1}, v{S1}, v{S1} quad_perm:[2,3,0,1] {FULL}")
    g.nop(1)
    A(f"v_cmp_gt_f32 vcc, v{S1}, v{V_M}")
    A(f"v_fma_f32 v{V_P}, v{S1}, s{S_C}, -v{V_MC}")
    A(f"s_cbranch_vccnz L_resc_{u}")
    g.lab(f"L_back_{u}")
    A(f"v_exp_f32 v{V_P}, v{V_P}")
    g.nop(1)
    A(f"v_cvt_pk_bf16_f32 v{V_PP}, v{V_P}, v{V_P}")
    A(f"v_add_f32 v{V_L}, v{V_L}, v{V_P}")
    g.nop(1)
    for t in range(4):
        for j in range(4):
            A(f"v_and_b32_dpp v{V_A+4*t+j}, v{V_PP}, v{V_MASK+j} row_newbcast:{TSRC[t]} {FULL}")
    A(f"s_waitcnt vmcnt({8*D-4})")
    for t in range(4):
        A(f"v_mfma_f32_16x16x32_bf16 {vr(V_ACC,4)}, {vr(V_A+4*t,4)}, {ar(vb+4*t,4)}, {vr(V_ACC,4)}")
    for t in range(4): kload1(g, "V", vb, t, sV, S_NV, acc=True)
    A(f"s_add_u32 s{S_NV}, s{S_NV}, {hex(STEP)}")
    o = []
    a = lambda s: o.append("    " + s)
    o.append(f"L_resc_{u}:")
    T = 3
    a(f"v_mov_b32 v{V_MX}, v{S1}")
    a("s_nop 1")
    a(f"v_max_f32_dpp v{V_MX}, v{V_MX}, v{V_MX} row_ror:4 {FULL}")
    a("s_nop 1")
    a(f"v_max_f32_dpp v{V_MX}, v{V_MX}, v{V_MX} row_ror:8 {FULL}")
    a("s_nop 0")
    a(f"v_mov_b32 v{T}, v{V_MX}")
    a("s_nop 1")
    a(f"v_permlane16_swap_b32 v{V_MX}, v{T}")
    a("s_nop 0")
    a(f"v_max_f32 v{V_MX}, v{V_MX}, v{T}")
    a("s_nop 0")
    a(f"v_mov_b32 v{T}, v{V_MX}")
    a("s_nop 1")
    a(f"v_permlane32_swap_b32 v{V_MX}, v{T}")
    a("s_nop 0")
    a(f"v_max_f32 v{V_MX}, v{V_MX}, v{T}")
    a(f"v_max_f32 v{V_MX}, v{V_MX}, v{V_M}")
    a(f"v_sub_f32 v{T}, v{V_M}, v{V_MX}")
    a(f"v_mul_f32 v{T}, s{S_C}, v{T}")
    a(f"v_exp_f32 v{T}, v{T}")
    a(f"v_mov_b32 v{V_M}, v{V_MX}")
    a(f"v_mul_f32 v{V_MC}, s{S_C}, v{V_MX}")
    for j in range(4):
        a(f"v_mul_f32 v{V_ACC+j}, v{V_ACC+j}, v{T}")
    a(f"v_mul_f32 v{V_L}, v{V_L}, v{T}")
    a(f"v_fma_f32 v{V_P}, v{S1}, s{S_C}, -v{V_MC}")
    a(f"s_branch L_back_{u}")
    g.ool += o

def build(prof=False, D=4, WQCH=(8, 8, 8, 8), WQWIN=32, WOCH=4, SPIN=0x2000, PRIO=None, GUCH=2):
    g = Gen(prof)
    A = g.A
    L = g.L
    STEP = 0x20000
    NIT = 64 // D
    assert 64 % D == 0
    L.append(f"; @launch grid=(256,1,1) block=(512,1,1) lds={LDS_SIZE}")
    L.append('.amdgcn_target "amdgcn-amd-amdhsa--gfx950"')
    L.append(".text")
    L.append(f".globl {KN}")
    L.append(".p2align 8")
    L.append(f".type {KN},@function")
    L.append(f"{KN}:")
    A("s_cmp_ge_u32 s2, 0x100")
    A("s_cbranch_scc1 L_end")
    A("s_load_dwordx16 s[52:67], s[0:1], 0")
    A("s_load_dwordx8 s[68:75], s[0:1], 64")
    if prof:
        A("s_memrealtime s[4:5]")
    A(f"v_lshrrev_b32 v3, 6, v0")
    A(f"v_and_b32 v{V_LANE}, 63, v0")
    A(f"v_readfirstlane_b32 s{S_W}, v3")
    A(f"v_lshlrev_b32 v{V_L16}, 4, v{V_LANE}")
    A("s_and_b32 s3, s2, 7")
    A("s_lshr_b32 s6, s2, 3")
    A("s_and_b32 s7, s6, 3")
    A(f"s_lshl_b32 s{S_H}, s3, 2")
    A(f"s_add_u32 s{S_H}, s{S_H}, s7")
    A(f"s_lshr_b32 s{S_J}, s6, 2")
    A(f"v_lshrrev_b32 v{V_R}, 4, v{V_LANE}")
    A(f"v_and_b32 v{V_C}, 15, v{V_LANE}")
    A(f"s_mov_b32 s{S_C}, {hex(f2u(C_SCALE))}")
    g.C("MFMA selection masks")
    A(f"v_and_b32 v3, 1, v{V_C}")
    A(f"v_lshlrev_b32 v3, 4, v3")
    A(f"v_mov_b32 v4, 0xffff")
    A(f"v_lshlrev_b32 v4, v3, v4")
    A(f"v_lshrrev_b32 v6, 1, v{V_C}")
    for j in range(4):
        A(f"v_cmp_eq_u32_e64 s[{86+2*j}:{87+2*j}], {j}, v6")
    A(f"s_cmp_ge_u32 s{S_W}, 4")
    for j in range(4):
        A(f"v_cndmask_b32_e64 v{V_MASK+j}, 0, v4, s[{86+2*j}:{87+2*j}]")
    if prof:
        A("s_waitcnt lgkmcnt(0)")
        A(f"v_mov_b32 v{V_ST}, s4")
        for k in range(1, 8): A(f"v_mov_b32 v{V_ST+k}, 0")
    A("s_cbranch_scc0 L_serv")

    g.C("======== streaming waves")
    A(f"s_sub_u32 s{S_W}, s{S_W}, 4")
    A(f"s_lshl_b32 s{S_NK}, s{S_H}, 23")
    A(f"s_lshl_b32 s7, s{S_J}, 2")
    A(f"s_add_u32 s7, s7, s{S_W}")
    A(f"s_lshl_b32 s7, s7, 12")
    A(f"s_add_u32 s{S_NK}, s{S_NK}, s7")
    A(f"s_mov_b32 s{S_NV}, s{S_NK}")
    g.srdsz(sK, 0x10000000); g.srdsz(sV, 0x10000000)
    A(f"v_mov_b32 v{V_OFF}, v{V_L16}")
    if PRIO == "stream": A("s_setprio 1")
    A("s_waitcnt lgkmcnt(0)")
    g.setsrd(sK, 1, 0); g.setsrd(sV, 2, 0)
    for u in range(D):
        for t in range(4): kload1(g, "K", V_K+16*u, t, sK, S_NK)
        A(f"s_add_u32 s{S_NK}, s{S_NK}, {hex(STEP)}")
        for t in range(4): kload1(g, "V", 16*u, t, sV, S_NV, acc=True)
        A(f"s_add_u32 s{S_NV}, s{S_NV}, {hex(STEP)}")
    A(f"s_mov_b32 s{S_CNT}, {NIT}")
    A(f"v_lshlrev_b32 v3, 4, v{V_C}")
    A("s_barrier")
    g.stamp(1)
    QR = 24
    for w in range(4):
        A(f"ds_read_b128 {vr(QR+8*w,4)}, v3 offset:{L_QP + 512*w}")
        A(f"ds_read_b128 {vr(QR+8*w+4,4)}, v3 offset:{L_QP + 512*w + 256}")
    A("s_waitcnt lgkmcnt(4)")
    for k in range(8): A(f"v_add_f32 v{QR+k}, v{QR+k}, v{QR+8+k}")
    A("s_waitcnt lgkmcnt(0)")
    for k in range(8): A(f"v_add_f32 v{QR+16+k}, v{QR+16+k}, v{QR+24+k}")
    for k in range(8): A(f"v_add_f32 v{QR+k}, v{QR+k}, v{QR+16+k}")
    for j in range(4): A(f"v_cvt_pk_bf16_f32 v{V_Q+j}, v{QR+2*j}, v{QR+2*j+1}")
    A(f"v_mov_b32 v{V_M}, 0xff800000")
    A(f"v_mov_b32 v{V_MC}, 0")
    A(f"v_mov_b32 v{V_L}, 0")
    for j in range(4): A(f"v_mov_b32 v{V_ACC+j}, 0")
    g.lab("L_loop")
    A(f"s_cmp_eq_u32 s{S_CNT}, 1")
    A(f"s_cselect_b32 s6, {hex(BIG)}, 0")
    A(f"v_or_b32 v{V_OFF}, s6, v{V_L16}")
    for u in range(D): unit(g, u, D, STEP)
    A(f"s_sub_u32 s{S_CNT}, s{S_CNT}, 1")
    A(f"s_cmp_lg_u32 s{S_CNT}, 0")
    A("s_cbranch_scc1 L_loop")
    g.stamp(2)
    g.C("streaming tail")
    for ctrl in ("row_ror:4 row_mask:0xf", "row_ror:8 row_mask:0xf", "row_bcast:15 row_mask:0xa", "row_bcast:31 row_mask:0xc"):
        g.nop(2) if ctrl != "row_ror:4 row_mask:0xf" else None
        A(f"v_add_f32_dpp v{V_L}, v{V_L}, v{V_L} {ctrl} bank_mask:0xf")
    A(f"s_mul_i32 s6, s{S_W}, 640")
    A(f"v_mul_u32_u24 v3, 384, v{V_R}")
    A(f"v_lshl_add_u32 v3, v{V_C}, 4, v3")
    A(f"v_add_u32 v3, s6, v3")
    A(f"s_lshl_b32 s7, s{S_W}, 3")
    A(f"v_mov_b32 v6, s7")
    A(f"v_mov_b32 v4, v{V_MC}")
    A(f"v_mov_b32 v5, v{V_L}")
    A("s_mov_b32 exec_hi, 0")
    A(f"ds_write_b128 v3, {vr(V_ACC,4)} offset:{L_OW}")
    A("s_mov_b32 exec_lo, 0")
    A("s_mov_b32 exec_hi, 0x80000000")
    A(f"ds_write_b64 v6, v[4:5] offset:{L_ML}")
    A("s_mov_b64 exec, -1")
    A("s_waitcnt lgkmcnt(0)")
    A("s_barrier")
    g.stamp(3)
    A("s_cmp_ge_u32 s2, 224")
    A("s_cbranch_scc0 L_exit")
    g.C("reader (streaming waves of the last 32 workgroups)")
    A(f"s_sub_u32 s{S_RHO}, s2, 224")
    g.srdsz(sWS, WS_SIZE if not prof else 0x800000); g.srdsz(sOUT, 1024); g.srdsz(sX, 1024)
    g.setsrd(sWS, 11, 0); g.setsrd(sOUT, 9, 0); g.setsrd(sX, 0, 0)
    R_T, R_ML, R_BP, R_XO, R_RW, R_RR, R_XV, R_G = 4, 5, 6, 7, 8, 9, 10, 13
    A(f"s_lshl_b32 s6, s{S_RHO}, 14")
    A(f"s_lshl_b32 s7, s{S_W}, 12")
    A("s_add_u32 s6, s6, s7")
    A(f"v_add_u32 v{R_T}, s6, v{V_L16}")
    A(f"s_lshl_b32 s7, s{S_W}, 9")
    A(f"s_add_u32 s7, s7, {hex(WS_ML)}")
    A(f"v_lshl_add_u32 v{R_ML}, v{V_LANE}, 3, s7")
    A(f"v_and_b32 v{R_BP}, 0xfc, v{V_LANE}")
    A(f"s_lshl_b32 s6, s{S_RHO}, 5")
    A(f"v_lshl_add_u32 v{R_XO}, v{V_C}, 1, s6")
    A(f"buffer_load_ushort v{R_XV}, v{R_XO}, {srd(sX)}, 0 offen")
    A(f"v_and_b32 v3, 3, v{V_C}")
    A(f"v_lshlrev_b32 v3, 4, v3")
    A(f"v_lshl_add_u32 v3, v{V_R}, 2, v3")
    A(f"s_lshl_b32 s6, s{S_W}, 6")
    A(f"v_add_u32 v{R_RW}, s6, v3")
    A(f"v_lshlrev_b32 v{R_RR}, 2, v{V_C}")
    A(f"ds_read_b32 v{R_G}, v{R_RR} offset:{L_G}")
    A(f"s_mov_b32 s{S_CNT}, {SPIN}")
    MA = V_S
    TB = V_K
    W0 = V_A
    RS = V_A + 4
    FR = V_A + 8
    A("s_waitcnt vmcnt(0)")
    A(f"v_lshlrev_b32 v{R_XV}, 16, v{R_XV}")
    g.lab("L_poll")
    A(f"buffer_load_dwordx2 {vr(MA,2)}, v{R_ML}, {srd(sWS)}, 0 offen sc1")
    for k in range(4):
        A(f"buffer_load_dwordx4 {vr(TB+4*k,4)}, v{R_T}, {srd(sWS)}, 0 offen offset:{1024*k} sc1")
    A("s_waitcnt vmcnt(4)")
    E, S = V_S+2, V_S+3
    A(f"v_max_f32_dpp v{E}, v{MA}, v{MA} quad_perm:[1,0,3,2] {FULL}")
    A(f"v_max_u32 v14, v{MA}, v{MA+1}")
    g.nop(1)
    A(f"v_max_f32_dpp v{E}, v{E}, v{E} quad_perm:[2,3,0,1] {FULL}")
    g.nop(2)
    A(f"v_max_f32_dpp v{E}, v{E}, v{E} row_half_mirror {FULL}")
    g.nop(1)
    A(f"v_sub_f32 v{E}, v{MA}, v{E}")
    A(f"v_exp_f32 v{E}, v{E}")
    g.nop(1)
    A(f"v_mul_f32 v{S}, v{E}, v{MA+1}")
    g.nop(2)
    A(f"v_add_f32_dpp v{S}, v{S}, v{S} quad_perm:[1,0,3,2] {FULL}")
    g.nop(2)
    A(f"v_add_f32_dpp v{S}, v{S}, v{S} quad_perm:[2,3,0,1] {FULL}")
    g.nop(2)
    A(f"v_add_f32_dpp v{S}, v{S}, v{S} row_half_mirror {FULL}")
    g.nop(1)
    A(f"v_rcp_f32 v{S}, v{S}")
    g.nop(1)
    A(f"v_mul_f32 v{E}, v{E}, v{S}")
    for k in range(4):
        A(f"ds_bpermute_b32 v{W0+k}, v{R_BP}, v{E} offset:{64*k}")
    A("s_waitcnt vmcnt(0)")
    for k in range(0, 16, 2):
        A(f"v_max3_u32 v14, v14, v{TB+k}, v{TB+k+1}")
    A("s_waitcnt lgkmcnt(0)")
    for jj in range(4): A(f"v_mul_f32 v{RS+jj}, v{W0}, v{TB+jj}")
    for k in range(1, 4):
        for jj in range(4): A(f"v_fmac_f32 v{RS+jj}, v{W0+k}, v{TB+4*k+jj}")
    A("v_cmp_eq_u32 vcc, -1, v14")
    g.nop(1)
    col_reduce(g, RS)
    A("s_cmp_eq_u64 vcc, 0")
    A("s_cselect_b32 s6, 0, -1")
    A(f"v_or_b32 v{RS}, s6, v{RS}")
    A("s_mov_b32 exec_lo, 0x000f000f")
    A("s_mov_b32 exec_hi, 0x000f000f")
    A(f"ds_write_b32 v{R_RW}, v{RS} offset:{L_RD}")
    A("s_mov_b64 exec, -1")
    A(f"v_xor_b32 v{R_RW}, 256, v{R_RW}")
    A("s_waitcnt lgkmcnt(0)")
    A("s_barrier")
    A(f"v_add_u32 v15, {L_RD}, v{R_RR}")
    A(f"ds_read2_b32 {vr(FR,2)}, v15 offset0:0 offset1:16")
    A(f"ds_read2_b32 {vr(FR+2,2)}, v15 offset0:32 offset1:48")
    A(f"v_xor_b32 v{R_RR}, 256, v{R_RR}")
    A("s_waitcnt lgkmcnt(0)")
    A(f"v_max3_u32 v14, v{FR}, v{FR+1}, v{FR+2}")
    A(f"v_max_u32 v14, v14, v{FR+3}")
    A("v_cmp_eq_u32 vcc, -1, v14")
    A(f"v_add_f32 v{FR}, v{FR}, v{FR+1}")
    A(f"v_add_f32 v{FR+2}, v{FR+2}, v{FR+3}")
    A(f"v_add_f32 v{FR}, v{FR}, v{FR+2}")
    bf16_round(g, FR, FR)
    A(f"v_mul_f32 v{FR}, v{FR}, v{R_G}")
    bf16_round(g, FR, FR)
    A(f"v_add_f32 v{FR}, v{R_XV}, v{FR}")
    A(f"v_cvt_pk_bf16_f32 v{FR}, v{FR}, v{FR}")
    A("s_cbranch_vccz L_poll_ok")
    A(f"s_sub_u32 s{S_CNT}, s{S_CNT}, 1")
    A(f"s_cmp_lg_u32 s{S_CNT}, 0")
    A("s_cbranch_scc1 L_poll")
    g.lab("L_poll_ok")
    g.stamp(5)
    A(f"s_cmp_eq_u32 s{S_W}, 0")
    A("s_cbranch_scc0 L_exit")
    A("s_mov_b64 exec, 0xffff")
    A(f"buffer_store_short v{FR}, v{R_XO}, {srd(sOUT)}, 0 offen")
    A("s_mov_b64 exec, -1")
    A("s_branch L_exit")

    g.q = []
    g.lab("L_serv")
    g.C("======== service waves")
    g.srdsz(sX, 1024); g.srdsz(sWQ, 0x400000)
    A(f"s_lshl_b32 s6, s{S_W}, 8")
    A(f"v_lshlrev_b32 v3, 3, v{V_C}")
    A(f"v_lshl_add_u32 v3, v{V_R}, 1, v3")
    A(f"v_add_u32 v3, s6, v3")
    A(f"v_lshlrev_b32 v13, 4, v{V_C}")
    A(f"v_lshl_add_u32 v{V_OWQ}, v{V_R}, 13, v13")
    A(f"s_lshl_b32 s6, s{S_W}, 20")
    A(f"s_lshl_b32 s7, s{S_H}, 8")
    A(f"s_add_u32 s{S_NK}, s6, s7")
    if PRIO == "serv": A("s_setprio 1")
    A("s_waitcnt lgkmcnt(0)")
    g.setsrd(sX, 0, 0)
    g.vm("x", f"buffer_load_dwordx4 {vr(V_X,4)}, v{V_L16}, {srd(sX)}, 0 offen")
    g.vm("xa", f"buffer_load_ushort v{V_XA}, v3, {srd(sX)}, 0 offen")
    g.vm("xb", f"buffer_load_ushort v{V_XB}, v3, {srd(sX)}, 0 offen offset:128")
    g.setsrd(sWQ, 3, 0)
    wq_i = [0]
    def wq_chunk(n):
        for _ in range(n):
            i = wq_i[0]
            if i >= WQWIN: g.wait(("wq", i - WQWIN))
            g.vm(("wq", i), f"buffer_load_dwordx4 {ar(4*i,4)}, v{V_OWQ}, {srd(sWQ)}, s{S_NK} offen")
            if i < 31: A(f"s_add_u32 s{S_NK}, s{S_NK}, 0x8000")
            wq_i[0] += 1
    wq_chunk(WQCH[0])
    g.C("sentinel offsets / stores")
    A(f"s_lshl_b32 s{S_P}, s{S_H}, 3")
    A(f"s_add_u32 s{S_P}, s{S_P}, s{S_J}")
    A("s_and_b32 s3, s2, 7")
    A("s_lshr_b32 s6, s2, 3")
    A(f"s_mul_i32 s{S_F}, s3, 22")
    A(f"s_add_u32 s{S_F}, s{S_F}, s6")
    A("s_cmp_lt_u32 s6, 22")
    A(f"s_cselect_b32 s{S_F}, s{S_F}, 0xffff")
    A(f"s_cmp_eq_u32 s{S_W}, 0")
    A(f"s_cselect_b32 s{S_F}, s{S_F}, 0xffff")
    g.srdsz(sWS, WS_SIZE if not prof else 0x800000); g.srdsz(sDBG, 256)
    g.setsrd(sWS, 11, 0); g.setsrd(sDBG, 10, 0)
    A(f"v_lshrrev_b32 v4, 1, v{V_C}")
    A(f"v_lshlrev_b32 v4, 14, v4")
    A(f"v_and_b32 v5, 1, v{V_C}")
    A(f"v_lshl_add_u32 v4, v5, 5, v4")
    A(f"v_lshl_add_u32 v4, v{V_R}, 4, v4")
    A(f"s_lshl_b32 s6, s{S_W}, 17")
    A(f"s_lshl_b32 s7, s{S_P}, 6")
    A("s_add_u32 s6, s6, s7")
    A(f"v_add_u32 v4, s6, v4")
    A(f"v_mov_b32 v10, {hex(BIG)}")
    A(f"v_cmp_gt_u32 vcc, 32, v{V_LANE}")
    A(f"v_lshrrev_b32 v5, 1, v{V_LANE}")
    A(f"v_lshlrev_b32 v5, 14, v5")
    A(f"v_cndmask_b32 v{V_OT}, v10, v4, vcc")
    A(f"v_and_b32 v6, 1, v{V_LANE}")
    A(f"v_lshl_add_u32 v5, v6, 5, v5")
    A(f"s_lshl_b32 s7, s{S_F}, 6")
    A(f"s_add_u32 s7, s7, {hex(WS_Y)}")
    A(f"s_cmp_lt_u32 s{S_F}, 172")
    A(f"s_cselect_b32 s7, s7, {hex(BIG)}")
    A(f"v_add_u32 v{V_OY}, s7, v5")
    A(f"v_cmp_eq_u32 vcc, 0, v0")
    A(f"s_lshl_b32 s6, s{S_P}, 3")
    A(f"s_add_u32 s6, s6, {hex(WS_ML)}")
    A(f"v_mov_b32 v4, s6")
    A(f"s_and_b32 s7, s2, 3")
    A(f"s_lshl_b32 s7, s7, 6")
    A(f"v_mov_b32 v5, s7")
    A(f"v_cndmask_b32 v{V_OML}, v10, v4, vcc")
    A(f"v_cndmask_b32 v{V_ODBG}, v10, v5, vcc")
    for k in range(4): A(f"v_mov_b32 v{4+k}, -1")
    g.vm("st", f"buffer_store_dwordx4 v[4:7], v{V_OT}, {srd(sWS)}, 0 offen sc1")
    g.vm("st", f"buffer_store_dwordx4 v[4:7], v{V_OY}, {srd(sWS)}, 0 offen sc1")
    g.vm("st", f"buffer_store_dwordx4 v[4:7], v{V_OY}, {srd(sWS)}, 0 offen offset:16 sc1")
    g.vm("st", f"buffer_store_dwordx2 v[4:5], v{V_OML}, {srd(sWS)}, 0 offen sc1")
    wq_chunk(WQCH[1])
    g.C("layernorm")
    XF, DD = V_XF, V_DD
    g.wait("x", "xa", "xb")
    for j in range(4):
        A(f"v_lshlrev_b32 v{XF+2*j}, 16, v{V_X+j}")
        A(f"v_and_b32 v{XF+2*j+1}, 0xffff0000, v{V_X+j}")
    A(f"v_add_f32 v3, v{XF}, v{XF+1}")
    A(f"v_add_f32 v8, v{XF+2}, v{XF+3}")
    A(f"v_add_f32 v9, v{XF+4}, v{XF+5}")
    A(f"v_add_f32 v13, v{XF+6}, v{XF+7}")
    A(f"v_add_f32 v3, v3, v8")
    A(f"v_add_f32 v9, v9, v13")
    A(f"v_add_f32 v3, v3, v9")
    g.row_allreduce([3])
    g.nop(1)
    g.xrow_allreduce(3, 8)
    A(f"v_mul_f32 v3, {hex(f2u(1.0/512))}, v3")
    for e in range(8):
        A(f"v_sub_f32 v{DD+e}, v{XF+e}, v3")
    A(f"v_mul_f32 v9, v{DD}, v{DD}")
    for e in range(1, 8):
        A(f"v_fmac_f32 v9, v{DD+e}, v{DD+e}")
    g.row_allreduce([9])
    g.nop(1)
    g.xrow_allreduce(9, 8)
    A(f"v_mul_f32 v9, {hex(f2u(1.0/512))}, v9")
    bf16_round(g, V_MEAN, 3)
    bf16_round(g, 9, 9)
    A(f"v_add_f32 v9, {hex(f2u(1e-5))}, v9")
    bf16_round(g, 9, 9)
    A(f"v_sqrt_f32 v9, v9")
    A(f"v_lshlrev_b32 v{V_XA}, 16, v{V_XA}")
    A(f"v_lshlrev_b32 v{V_XB}, 16, v{V_XB}")
    bf16_round(g, V_SD, 9)
    A(f"v_rcp_f32 v{V_RC}, v{V_SD}")
    def normalize(src, tmp, dst_pk):
        n = len(src)
        for e in range(n): A(f"v_sub_f32 v{src[e]}, v{src[e]}, v{V_MEAN}")
        for e in range(n): A(f"v_cvt_pk_bf16_f32 v{src[e]}, v{src[e]}, v{src[e]}")
        for e in range(n): A(f"v_and_b32 v{src[e]}, 0xffff0000, v{src[e]}")
        for e in range(n): A(f"v_mul_f32 v{tmp[e]}, v{src[e]}, v{V_RC}")
        for e in range(n): A(f"v_fma_f32 v{src[e]}, -v{tmp[e]}, v{V_SD}, v{src[e]}")
        for e in range(n): A(f"v_fmac_f32 v{tmp[e]}, v{src[e]}, v{V_RC}")
        for e in range(n): A(f"v_cvt_pk_bf16_f32 v{dst_pk[e]}, v{tmp[e]}, v{tmp[e]}")
    normalize([V_XA, V_XB], [8, 9], [V_X0, V_X1])
    for n in WQCH[2:]: wq_chunk(n)
    assert wq_i[0] == 32
    A(f"s_mov_b32 s{S_PH}, 0")
    g.lab("L_mm")
    g.C("vector x matrix via selection-mask MFMAs (used for wq, then for wo)")
    def ands(i):
        x = V_X0 + (i >> 4)
        for j in range(4):
            A(f"v_and_b32_dpp v{V_A+4*(i&3)+j}, v{x}, v{V_MASK+j} row_newbcast:{i&15} {FULL}")
    ands(0)
    for i in range(32):
        if i < 31: ands(i+1)
        else: g.nop(2)
        if i % 4 == 0: A(f"s_waitcnt vmcnt({28-i})")
        c = "0" if i == 0 else vr(V_ACC,4)
        A(f"v_mfma_f32_16x16x32_bf16 {vr(V_ACC,4)}, {vr(V_A+4*(i&3),4)}, {ar(4*i,4)}, {c}")
    g.q = []
    A(f"s_cmp_eq_u32 s{S_PH}, 0")
    A("s_cbranch_scc0 L_tout")
    A(f"s_lshl_b32 s6, s{S_W}, 9")
    A(f"v_add_u32 v3, s6, v{V_L16}")
    A("s_mov_b32 exec_hi, 0")
    g.nop(6)
    A(f"ds_write_b128 v3, {vr(V_ACC,4)} offset:{L_QP}")
    A("s_mov_b32 exec_hi, -1")
    A("s_waitcnt lgkmcnt(0)")
    A("s_barrier")
    g.stamp(1)
    A(f"v_mov_b32 v4, 1")
    g.vm("atom", f"buffer_atomic_add v4, v{V_ODBG}, {srd(sDBG)}, 0 offen sc1")
    A(f"s_cmp_lt_u32 s{S_F}, 172")
    A("s_cbranch_scc0 L_ffn_done")
    g.C("FFN slice: 8 hidden columns")
    g.srdsz(sG, 1409024); g.srdsz(sU, 1409024); g.srdsz(sD, 1409024)
    g.setsrd(sG, 6, 0); g.setsrd(sU, 7, 0); g.setsrd(sD, 8, 0)
    A(f"s_lshl_b32 s6, s{S_F}, 4")
    A(f"v_mul_u32_u24 v{V_OGU}, {8*2752}, v{V_LANE}")
    A(f"v_add_u32 v{V_OGU}, s6, v{V_OGU}")
    A(f"s_lshl_b32 s6, s{S_F}, 13")
    A(f"v_add_u32 v{V_OWD}, s6, v{V_L16}")
    XH, XL = V_DD, V_XF
    def gu_issue(i0):
        for i in range(i0, i0+GUCH):
            b = V_GU + 8*(i-i0)
            so = f"s{S_NK}"
            A(f"s_mov_b32 s{S_NK}, {i*2752}")
            g.vm("gu", f"buffer_load_dwordx4 {vr(b,4)}, v{V_OGU}, {srd(sG)}, {so} offen")
            g.vm("gu", f"buffer_load_dwordx4 {vr(b+4,4)}, v{V_OGU}, {srd(sU)}, {so} offen")
    assert GUCH in (1, 2)
    gu_issue(0)
    normalize([XF+e for e in range(8)], [DD+e for e in range(8)], [XH+e for e in range(8)])
    for e in range(8): A(f"v_and_b32 v{XH+e}, 0xffff0000, v{XH+e}")
    for e in range(8): A(f"v_lshrrev_b32 v{XL+e}, 16, v{XH+e}")
    for i0 in range(0, 8, GUCH):
        g.wait("gu")
        for i in range(i0, i0+GUCH):
            b = V_GU + 8*(i-i0)
            for m in range(2):
                for j in range(4):
                    c0 = "0" if i == 0 else f"v{V_FA+8*m+2*j}"
                    c1 = "0" if i == 0 else f"v{V_FA+8*m+2*j+1}"
                    A(f"v_dot2_f32_bf16 v{V_FA+8*m+2*j}, v{b+4*m+j}, v{XL+i}, {c0}")
                    A(f"v_dot2_f32_bf16 v{V_FA+8*m+2*j+1}, v{b+4*m+j}, v{XH+i}, {c1}")
        if i0 + GUCH < 8: gu_issue(i0 + GUCH)
    G, U = V_FA, V_FA+8
    g.nop(3)
    for e in range(8): A(f"v_permlane32_swap_b32 v{G+e}, v{U+e}")
    for e in range(8): A(f"v_add_f32 v{G+e}, v{G+e}, v{U+e}")
    A(f"s_mov_b32 s{S_NK}, 0x1000")
    for e in range(4): A(f"v_permlane16_swap_b32 v{G+e}, v{G+4+e}")
    for e in range(4): A(f"v_add_f32 v{8+e if e < 3 else 13}, v{G+e}, v{G+4+e}")
    Z = [8, 9, 10, 13]
    WD = V_GU
    for e in range(8):
        so = "0" if e < 4 else f"s{S_NK}"
        g.vm("wd", f"buffer_load_dwordx4 {vr(WD+4*e,4)}, v{V_OWD}, {srd(sD)}, {so} offen offset:{(e&3)*1024}")
    g.row_allreduce(Z)
    g.nop(1)
    for b in range(1, 4):
        A(f"v_mov_b32_dpp v{Z[0]}, v{Z[b]} quad_perm:[0,1,2,3] row_mask:0xf bank_mask:{hex(1<<b)}")
    bf16_round(g, Z[0], Z[0])
    A(f"v_mov_b32 v9, v{Z[0]}")
    g.nop(2)
    A(f"v_permlane32_swap_b32 v{Z[0]}, v9")
    g.nop(1)
    silu(g, 5, Z[0], 4)
    bf16_round(g, 5, 5)
    A(f"v_mul_f32 v5, v5, v9")
    bf16_round(g, 5, 5)
    g.nop(1)
    for e in range(8):
        A(f"v_readlane_b32 s{S_H0+e}, v5, {(e&3)*4 + (e>>2)*16}")
    for e in range(8):
        A(f"s_lshr_b32 s{S_H0+8+e}, s{S_H0+e}, 16")
    Y = V_XF
    g.wait("wd")
    for e in range(8):
        for j in range(4):
            c0 = "0" if e == 0 else f"v{Y+2*j}"
            c1 = "0" if e == 0 else f"v{Y+2*j+1}"
            A(f"v_dot2_f32_bf16 v{Y+2*j}, v{WD+4*e+j}, s{S_H0+8+e}, {c0}")
            A(f"v_dot2_f32_bf16 v{Y+2*j+1}, v{WD+4*e+j}, s{S_H0+e}, {c1}")
    g.nop(3)
    A(f"buffer_store_dwordx4 {vr(Y,4)}, v{V_OY}, {srd(sWS)}, 0 offen sc1")
    A(f"buffer_store_dwordx4 {vr(Y+4,4)}, v{V_OY}, {srd(sWS)}, 0 offen offset:16 sc1")
    g.lab("L_ffn_done")
    g.stamp(2)
    g.C("wo prefetch: rows h*128.., columns w*128..")
    g.q = []
    g.srdsz(sWO, 0x400000)
    g.setsrd(sWO, 4, 0)
    A(f"v_lshlrev_b32 v13, 4, v{V_C}")
    A(f"v_lshl_add_u32 v{V_OWO}, v{V_R}, 10, v13")
    A(f"s_lshl_b32 s6, s{S_H}, 17")
    A(f"s_lshl_b32 s7, s{S_W}, 8")
    A(f"s_add_u32 s{S_NK}, s6, s7")
    for i in range(32):
        if i % WOCH == 0 and i > 0: A("s_waitcnt vmcnt(0)")
        A(f"buffer_load_dwordx4 {ar(4*i,4)}, v{V_OWO}, {srd(sWO)}, s{S_NK} offen")
        if i < 31: A(f"s_add_u32 s{S_NK}, s{S_NK}, 0x1000")
    A("s_cmp_ge_u32 s2, 224")
    A(f"s_cselect_b32 s6, s{S_W}, 0")
    A("s_cmp_eq_u32 s6, 1")
    A("s_cbranch_scc0 L_prep_done")
    g.C("reader preparation")
    A(f"s_sub_u32 s{S_RHO}, s2, 224")
    A(f"v_and_b32 v3, 3, v{V_LANE}")
    A(f"v_lshlrev_b32 v3, 6, v3")
    A(f"s_mov_b32 s{S_CNT}, {SPIN}")
    g.lab("L_pc")
    A(f"buffer_load_dword v4, v3, {srd(sDBG)}, 0 offen sc1")
    A("s_waitcnt vmcnt(0)")
    A("v_cmp_ne_u32 vcc, 64, v4")
    A("s_cbranch_vccz L_pc_ok")
    A("s_sleep 16")
    A(f"s_sub_u32 s{S_CNT}, s{S_CNT}, 1")
    A(f"s_cmp_lg_u32 s{S_CNT}, 0")
    A("s_cbranch_scc1 L_pc")
    g.lab("L_pc_ok")
    A(f"s_lshl_b32 s6, s{S_RHO}, 14")
    A(f"s_add_u32 s6, s6, {hex(WS_Y)}")
    A(f"v_add_u32 v3, s6, v{V_L16}")
    A(f"v_mov_b32 v10, {hex(BIG)}")
    A(f"v_cmp_gt_u32 vcc, 48, v{V_LANE}")
    A("s_mov_b32 s6, 0x1000")
    A("s_mov_b32 s7, 0x2000")
    A(f"v_cndmask_b32 v4, v10, v3, vcc")
    YB = [56, 60, 64, 68, 72, 84, 88, 92, 96, 100, 104]
    A(f"s_mov_b32 s{S_CNT}, {SPIN}")
    g.lab("L_py")
    for k in range(11):
        so = ["0", "s6", "s7"][k >> 2]
        A(f"buffer_load_dwordx4 {vr(YB[k],4)}, v{4 if k == 10 else 3}, {srd(sWS)}, {so} offen offset:{(k&3)*1024} sc1")
    A("s_waitcnt vmcnt(0)")
    flat = [b+j for b in YB for j in range(4)]
    A(f"v_max3_u32 v5, v{flat[0]}, v{flat[1]}, v{flat[2]}")
    for k in range(3, 43, 2):
        A(f"v_max3_u32 v5, v5, v{flat[k]}, v{flat[k+1]}")
    A(f"v_max_u32 v5, v5, v{flat[43]}")
    A("v_cmp_eq_u32 vcc, -1, v5")
    A("s_cbranch_vccz L_py_ok")
    A("s_sleep 16")
    A(f"s_sub_u32 s{S_CNT}, s{S_CNT}, 1")
    A(f"s_cmp_lg_u32 s{S_CNT}, 0")
    A("s_cbranch_scc1 L_py")
    g.lab("L_py_ok")
    for k in range(1, 11):
        for j in range(4): A(f"v_add_f32 v{YB[0]+j}, v{YB[0]+j}, v{YB[k]+j}")
    col_reduce(g, YB[0])
    bf16_round(g, YB[0], YB[0])
    silu(g, 5, YB[0], 4)
    bf16_round(g, 5, 5)
    A(f"v_and_b32 v3, 3, v{V_C}")
    A(f"v_lshlrev_b32 v3, 4, v3")
    A(f"v_lshl_add_u32 v3, v{V_R}, 2, v3")
    A("s_mov_b32 exec_lo, 0x000f000f")
    A("s_mov_b32 exec_hi, 0x000f000f")
    A(f"ds_write_b32 v3, v5 offset:{L_G}")
    A("s_mov_b64 exec, -1")
    g.lab("L_prep_done")
    A(f"v_and_b32 v3, 1, v{V_C}")
    A(f"v_mul_u32_u24 v3, 384, v3")
    A(f"v_lshrrev_b32 v4, 1, v{V_C}")
    A(f"v_lshl_add_u32 v3, v4, 4, v3")
    A(f"v_lshl_add_u32 v3, v{V_R}, 2, v3")
    A(f"v_add_u32 v3, {L_OW}, v3")
    A(f"v_mov_b32 v4, {L_ML}")
    A(f"s_mov_b32 s{S_PH}, 1")
    A("s_waitcnt vmcnt(0) lgkmcnt(0)")
    g.stamp(3)
    A("s_barrier")
    g.stamp(4)
    g.C("combine the four streaming waves")
    ML = 32
    OW = V_A
    A(f"ds_read_b128 {vr(ML,4)}, v4")
    A(f"ds_read_b128 {vr(ML+4,4)}, v4 offset:16")
    for k in range(4):
        A(f"ds_read2_b32 {vr(OW+2*k,2)}, v3 offset0:{160*k} offset1:{160*k+32}" if 160*k+32 < 256 else
          f"ds_read2_b32 {vr(OW+2*k,2)}, v5 offset0:{160*(k-2)} offset1:{160*(k-2)+32}")
        if k == 0: A(f"v_add_u32 v5, 1280, v3")
    A("s_waitcnt lgkmcnt(4)")
    A(f"v_max3_f32 v6, v{ML}, v{ML+2}, v{ML+4}")
    A(f"v_max_f32 v6, v6, v{ML+6}")
    for k in range(4): A(f"v_sub_f32 v{ML+2*k}, v{ML+2*k}, v6")
    for k in range(4): A(f"v_exp_f32 v{ML+2*k}, v{ML+2*k}")
    A("s_waitcnt lgkmcnt(0)")
    A(f"v_mul_f32 v8, v{ML}, v{OW}")
    A(f"v_mul_f32 v9, v{ML}, v{OW+1}")
    for k in range(1, 4):
        A(f"v_fmac_f32 v8, v{ML+2*k}, v{OW+2*k}")
        A(f"v_fmac_f32 v9, v{ML+2*k}, v{OW+2*k+1}")
    A(f"v_cvt_pk_bf16_f32 v{V_X0}, v8, v8")
    A(f"v_cvt_pk_bf16_f32 v{V_X1}, v9, v9")
    A(f"v_mul_f32 v7, v{ML}, v{ML+1}")
    for k in range(1, 4):
        A(f"v_fmac_f32 v7, v{ML+2*k}, v{ML+2*k+1}")
    A("s_branch L_mm")
    g.lab("L_tout")
    g.nop(6)
    A(f"buffer_store_dwordx4 {vr(V_ACC,4)}, v{V_OT}, {srd(sWS)}, 0 offen sc1")
    A(f"buffer_store_dwordx2 v[6:7], v{V_OML}, {srd(sWS)}, 0 offen sc1")
    g.stamp(5)
    g.lab("L_exit")
    if prof:
        g.stamp(7)
        A("s_mov_b64 exec, 1")
        A(f"v_readfirstlane_b32 s3, v0")
        A(f"s_lshr_b32 s3, s3, 6")
        A(f"s_lshl_b32 s6, s2, 3")
        A(f"s_add_u32 s6, s6, s3")
        A(f"s_lshl_b32 s6, s6, 5")
        A(f"s_add_u32 s6, s6, {hex(WS_STAMP)}")
        A(f"v_mov_b32 v3, s6")
        g.srdsz(sWS, 0x800000); g.setsrd(sWS, 11, 0)
        A(f"buffer_store_dwordx4 {vr(V_ST,4)}, v3, {srd(sWS)}, 0 offen")
        A(f"buffer_store_dwordx4 {vr(V_ST+4,4)}, v3, {srd(sWS)}, 0 offen offset:16")
    g.lab("L_end")
    A("s_endpgm")
    L.extend(g.ool)
    L.append('.section .rodata,"a"')
    L.append(".p2align 6")
    L.append(f".amdhsa_kernel {KN}")
    L.append(f"  .amdhsa_next_free_vgpr 256")
    L.append("  .amdhsa_next_free_sgpr 102")
    L.append(f"  .amdhsa_accum_offset 128")
    L.append("  .amdhsa_group_segment_fixed_size 0")
    L.append("  .amdhsa_kernarg_size 96")
    L.append("  .amdhsa_user_sgpr_count 2")
    L.append("  .amdhsa_user_sgpr_kernarg_segment_ptr 1")
    L.append("  .amdhsa_system_sgpr_workgroup_id_x 1")
    L.append(".end_amdhsa_kernel")
    return "\n".join(L) + "\n"

if __name__ == "__main__":
    prof = "--prof" in sys.argv
    kw = {}
    for a in sys.argv[1:]:
        if a.startswith("--") and "=" in a:
            k, v = a[2:].split("=")
            if k == "WQCH": kw[k] = tuple(int(x) for x in v.split(","))
            elif k == "PRIO": kw[k] = v
            else: kw[k] = int(v, 0)
    out = [a for a in sys.argv[1:] if not a.startswith("--")]
    s = build(prof, **kw)
    if out: open(out[0], "w").write(s)
    else: sys.stdout.write(s)
```
